```python
import torch

def _softmax(x, axis=-1):
    return torch.softmax(x, dim=axis)

def _gelu(x):
    return torch.nn.functional.gelu(x, approximate='tanh')

def _silu(x):
    return torch.nn.functional.silu(x)

def _sigmoid(x):
    return torch.sigmoid(x)

def _layernorm(x, axis=-1, eps=1e-05):
    m = x.mean(dim=axis, keepdim=True)
    v = x.var(dim=axis, keepdim=True, unbiased=False)
    return (x - m) / torch.sqrt(v + eps)

def _scatter_add(tgt, idx, src, axis=0):
    return tgt.clone().index_add_(axis, idx, src)

def _segment_sum(src, seg, n):
    out = torch.zeros((n,) + src.shape[1:], dtype=src.dtype)
    return out.index_add_(0, seg, src)

def _pad(x, pw):
    flat = tuple((v for pair in reversed(pw) for v in pair))
    return torch.nn.functional.pad(x, flat)
kernel_name = 'parallel_sum__grouped_kv_mqa__mixer_gmlp__prompt'

def setup_inputs():

    _w = lambda a: (lambda t: t.to(torch.bfloat16) if t.is_floating_point() else t)(torch.as_tensor(a))

    def _A_setup():
        B, S, D, H = (1, 2048, 576, 32)
        Dh = D // H
        return {'x': _w((lambda *s: torch.randn(*s, dtype=torch.bfloat16) * 0.05)(B, S, D)), 'wq': _w((lambda *s: torch.randn(*s, dtype=torch.bfloat16) * 0.2)(D, H * Dh)), 'wk': _w((lambda *s: torch.randn(*s, dtype=torch.bfloat16) * 0.2)(D, Dh)), 'wv': _w((lambda *s: torch.randn(*s, dtype=torch.bfloat16) * 0.1)(D, Dh)), 'wo': _w((lambda *s: torch.randn(*s, dtype=torch.bfloat16) * 0.1)(H * Dh, D))}
    _A_in = _A_setup()

    def _B_setup():
        B, S, D, F = (1, 2048, 576, 4608)
        Fh = F // 2
        return {'x': _w((lambda *s: torch.randn(*s, dtype=torch.bfloat16) * 0.05)(B, S, D)), 'w_in': _w((lambda *s: torch.randn(*s, dtype=torch.bfloat16) * 0.4)(D, 2 * Fh)), 'w_sp': _w(0.01 * (lambda *s: torch.randn(*s, dtype=torch.bfloat16) * 0.4)(S, S)), 'b_sp': _w(1.0 + 0.01 * (lambda *s: torch.randn(*s, dtype=torch.bfloat16) * 0.1)(S)), 'w_out': _w((lambda *s: torch.randn(*s, dtype=torch.bfloat16) * 0.1)(Fh, D))}
    _B_in = _B_setup()
    return {'A_x': _A_in['x'], 'A_wq': _A_in['wq'], 'A_wk': _A_in['wk'], 'A_wv': _A_in['wv'], 'A_wo': _A_in['wo'], 'B_x': _B_in['x'], 'B_w_in': _B_in['w_in'], 'B_w_sp': _B_in['w_sp'], 'B_b_sp': _B_in['b_sp'], 'B_w_out': _B_in['w_out']}

def reference(A_x, A_wq, A_wk, A_wv, A_wo, B_x, B_w_in, B_w_sp, B_b_sp, B_w_out):

    def _A_ref(x, wq, wk, wv, wo):
        B, S, D = x.shape
        H = 32
        Dh = D // H
        q = (lambda x, *d: x.permute(*d))((x @ wq).reshape(B, S, H, Dh), 0, 2, 1, 3)
        k = x @ wk
        v = x @ wv
        scores = torch.einsum('bhqd,bkd->bhqk', q, k) * Dh ** (-0.5)
        p = _softmax(scores, axis=-1)
        o = torch.einsum('bhqk,bkd->bhqd', p, v)
        return (lambda x, *d: x.permute(*d))(o, 0, 2, 1, 3).reshape(B, S, H * Dh) @ wo

    def _B_ref(x, w_in, w_sp, b_sp, w_out):
        B, S, D = x.shape
        F = w_in.shape[-1]
        Fh = F // 2
        z = _gelu(torch.einsum('bsd,df->bsf', x, w_in))
        z1 = z[..., :Fh].clone()
        z2 = _layernorm(z[..., Fh:], axis=-1)
        g = torch.einsum('ts,bsf->btf', w_sp, z2) + b_sp[None, :, None]
        return torch.einsum('bsf,fd->bsd', z1 * g, w_out)
    x = A_x
    xn = _layernorm(x, axis=-1)
    return x + _A_ref(xn, A_wq, A_wk, A_wv, A_wo) + _B_ref(xn, B_w_in, B_w_sp, B_b_sp, B_w_out)
```

```python
import struct, os
def f2u(x):
    return struct.unpack("<I", struct.pack("<f", x))[0]

class Asm:
    def __init__(self):
        self.lines = []
        self.kds = []
        self.launch = []
        self.uid = 0
    def e(self, s):
        import os
        drop = os.environ.get("DROP", "")
        for l in s.split("\n"):
            l = l.strip()
            if drop and getattr(self, "dropping", False) and any(l.startswith(d) for d in drop.split(",")): continue
            sf = os.environ.get("STFLAG")
            if sf and l.startswith("buffer_store_dwordx4"): l = l + " " + sf
            if l: self.lines.append("    " + l if not l.endswith(":") else l)
    def c(self, s):
        self.lines.append("    ; " + s)
    def label(self, name):
        self.lines.append(name + ":")
    def newlabel(self, p="L"):
        self.uid += 1
        return f"{p}_{self.uid}"
    def begin_kernel(self, name, grid, block, lds):
        self.launch.append(f"; @launch kernel={name} grid=({grid},1,1) block=({block},1,1) lds={lds}")
        self.lines += [".text", f".globl {name}", ".p2align 8", f".type {name},@function", f"{name}:"]
    def end_kernel(self, name, vgprs, sgprs=102):
        v = (vgprs + 7)//8*8
        self.kds.append(f""".section .rodata,"a"
.p2align 6
.amdhsa_kernel {name}
  .amdhsa_next_free_vgpr {v}
  .amdhsa_next_free_sgpr {sgprs}
  .amdhsa_accum_offset {v}
  .amdhsa_group_segment_fixed_size 0
  .amdhsa_kernarg_size 104
  .amdhsa_user_sgpr_count 2
  .amdhsa_user_sgpr_kernarg_segment_ptr 1
  .amdhsa_system_sgpr_workgroup_id_x 1
.end_amdhsa_kernel""")
    def text(self, header=""):
        return header + "\n".join(self.launch) + "\n" + '.amdgcn_target "amdgcn-amd-amdhsa--gfx950"\n' + "\n".join(self.lines) + "\n" + "\n".join(self.kds) + "\n"

def vr(a, n):
    return f"v[{a}:{a+n-1}]" if n > 1 else f"v{a}"
def sr(a, n):
    return f"s[{a}:{a+n-1}]" if n > 1 else f"s{a}"

class VAlloc:
    def __init__(self, start=1):
        self.n = start
    def get(self, n=1, align=1):
        self.n = (self.n + align - 1)//align*align
        r = self.n; self.n += n
        return r


class Stamps:
    def __init__(self, a, enable, sWS, vtmp, wg=0):
        self.a = a; self.en = enable; self.sWS = sWS; self.vt = vtmp; self.wg = wg
    def init(self, sWave, off):
        if not self.en: return
        self.a.e(f"s_lshl_b32 s98, s{sWave}, 8\ns_add_u32 s98, s98, {off}\ns_mov_b32 s99, 0")
    def stamp(self):
        if not self.en: return
        a = self.a; L = a.newlabel("stmp"); vt = self.vt; sWS = self.sWS
        a.e(f"""s_cmp_lg_u32 s2, {self.wg}
        s_cbranch_scc1 {L}
        {"s_memrealtime" if os.environ.get("REALT") else "s_memtime"} s[96:97]
        s_waitcnt lgkmcnt(0)
        v_mov_b32 v{vt}, s96
        v_mov_b32 v{vt+1}, s99
        v_lshlrev_b32 v{vt+1}, 2, v{vt+1}
        s_add_u32 s99, s99, 1
        buffer_store_dword v{vt}, v{vt+1}, s[{sWS}:{sWS+3}], s98 offen
        v_mov_b32 v{vt}, s99
        v_mov_b32 v{vt+1}, 0
        buffer_store_dword v{vt}, v{vt+1}, s[{sWS}:{sWS+3}], s98 offen offset:252
        """)
        a.label(L)
```

```python
from asmlib import *
from layout import *
import math, os

GK0 = -2.0*math.log2(math.e)*math.sqrt(2.0/math.pi)
GK1 = GK0*0.044715

def rnd_bf16(a, v, tmp):
    a.e(f"v_cvt_pk_bf16_f32 v{tmp}, v{v}, v{v}")
    a.e(f"v_lshlrev_b32 v{v}, 16, v{tmp}")

def ln_scalars(a, vsum, vsq, n, vr_out, vnb_out, t0, t1, t2):
    a.e(f"""
    v_mul_f32 v{t1}, 0x{f2u(1.0/n):08x}, v{vsum}
    v_mul_f32 v{t0}, 0x{f2u(1.0/n):08x}, v{vsq}
    v_fma_f32 v{t0}, -v{t1}, v{t1}, v{t0}
    v_max_f32 v{t0}, 0, v{t0}
    """)
    rnd_bf16(a, t1, t2)
    rnd_bf16(a, t0, t2)
    a.e(f"v_add_f32 v{t0}, 0x{f2u(1e-5):08x}, v{t0}")
    rnd_bf16(a, t0, t2)
    a.e(f"v_sqrt_f32 v{t0}, v{t0}\ns_nop 0")
    rnd_bf16(a, t0, t2)
    a.e(f"v_rcp_f32 v{vr_out}, v{t0}\ns_nop 0")
    a.e(f"v_mul_f32 v{vnb_out}, v{t1}, v{vr_out}")
    a.e(f"v_sub_f32 v{vnb_out}, 0, v{vnb_out}")

def gelu_regs(a, regs, tmps, sK1, vK0, hook=None):
    n = len(tmps)
    hook = hook or (lambda: None)
    for i in range(0, len(regs), n):
        grp = regs[i:i+n]
        for x, t in zip(grp, tmps): a.e(f"v_mul_f32 v{t}, v{x}, v{x}")
        for x, t in zip(grp, tmps): a.e(f"v_fma_f32 v{t}, v{t}, s{sK1}, v{vK0}")
        for x, t in zip(grp, tmps): a.e(f"v_mul_f32 v{t}, v{t}, v{x}")
        hook()
        for x, t in zip(grp, tmps): a.e(f"v_exp_f32 v{t}, v{t}")
        for x, t in zip(grp, tmps): a.e(f"v_add_f32 v{t}, 1.0, v{t}")
        hook()
        for x, t in zip(grp, tmps): a.e(f"v_rcp_f32 v{t}, v{t}")
        for x, t in zip(grp, tmps): a.e(f"v_mul_f32 v{x}, v{x}, v{t}")
        hook()

def gen_k1(a):
    name = "k1_kernel"
    BUF = 36864
    a.begin_kernel(name, 256, 512, 4*BUF)
    va = VAlloc(1)
    vL = va.get(); vL15 = va.get(); vG = va.get(); vL31 = va.get(); vHH = va.get()
    vRowl = va.get(); vChunk16 = va.get(); vDma = va.get()
    vW = va.get(); vWb = va.get()
    vXo = [va.get(), va.get(), va.get(), va.get()]
    vK0 = va.get()
    vO = [va.get(), va.get()]
    vT0 = va.get(8, 4); vT = [vT0+i for i in range(8)]
    xr = [va.get(4, 4) for t in range(36)]
    acc = va.get(16, 4)
    NS = 5
    Wf = [va.get(4, 4) for s in range(NS)]
    st = va.get(32, 4)
    vst = va.get(2)
    stp = Stamps(a, bool(os.environ.get('STAMPS')), 24, vst, wg=int(os.environ.get('STWG','0')))
    nv = va.n
    ones = st
    wpre = xr[18]
    END = "k1_end"
    a.e(f"""
    s_cmp_ge_u32 s2, 256
    s_cbranch_scc1 {END}
    s_load_dwordx4 s[4:7], s[0:1], 0
    s_load_dwordx4 s[8:11], s[0:1], 16
    s_load_dwordx2 s[12:13], s[0:1], 48
    s_load_dwordx2 s[14:15], s[0:1], 96
    v_lshrrev_b32 v{vT[0]}, 6, v0
    v_and_b32 v{vL}, 63, v0
    s_nop 0
    v_readfirstlane_b32 s28, v{vT[0]}
    v_and_b32 v{vL15}, 15, v{vL}
    v_lshrrev_b32 v{vG}, 4, v{vL}
    v_and_b32 v{vL31}, 31, v{vL}
    v_lshrrev_b32 v{vHH}, 5, v{vL}
    s_lshr_b32 s29, s28, 2
    {"s_xor_b32 s29, s29, 1" if os.environ.get("X_SWAP") else ""}
    s_and_b32 s30, s28, 3
    s_and_b32 s39, s2, 7
    s_lshr_b32 s40, s2, 3
    s_and_b32 s41, s40, 1
    s_lshl_b32 s32, s39, 1
    s_add_u32 s32, s32, s41
    s_lshr_b32 s31, s40, 1
    s_mul_i32 s33, s32, 10
    s_min_u32 s39, s32, 4
    s_add_u32 s33, s33, s39
    s_cmp_lt_u32 s32, 4
    s_cselect_b32 s34, 11, 10
    s_lshl_b32 s36, s31, 7
    s_lshl_b32 s39, s30, 5
    s_add_u32 s36, s36, s39
    s_mov_b32 s44, 0x{f2u(GK1):08x}
    s_mov_b32 s45, 0xffff0000
    v_mov_b32 v{vK0}, 0x{f2u(GK0):08x}
    """)
    a.e(f"""
    v_lshrrev_b32 v{vRowl}, 2, v{vL}
    v_and_b32 v{vT[0]}, 3, v{vL}
    v_lshlrev_b32 v{vChunk16}, 4, v{vT[0]}
    """)
    a.e(f"""
    v_bfe_u32 v{vT[0]}, v{vL}, 2, 2
    v_lshl_add_u32 v{vT[0]}, v{vHH}, 3, v{vT[0]}
    v_lshlrev_b32 v{vT[0]}, 6, v{vT[0]}
    v_and_b32 v{vT[1]}, 3, v{vL}
    v_lshl_add_u32 v{vT[0]}, v{vT[1]}, 3, v{vT[0]}
    v_and_b32 v{vT[1]}, 1, v{vG}
    v_lshl_add_u32 v{vW}, v{vT[1]}, 5, v{vT[0]}
    s_waitcnt lgkmcnt(0)
    s_mov_b32 s16, s4
    s_mov_b32 s17, s5
    s_mov_b32 s18, {S*D*2}
    s_mov_b32 s19, 0x00020000
    s_mov_b32 s24, s14
    s_mov_b32 s25, s15
    s_mov_b32 s26, 0x10000000
    s_mov_b32 s27, 0x00020000
    s_mov_b32 s23, 0x00020000
    """)
    def dma(sBi, sJ, toreg=None, setup_only=False):
        a.e(f"""
        s_mov_b32 s20, s12
        s_mov_b32 s21, s13
        s_mov_b32 s22, {D*F*2}
        s_movk_i32 s37, 9216
        s_sub_u32 s38, s{sBi}, 20
        s_lshl_b32 s38, s38, 6
        s_lshl_b32 s39, s{sBi}, 6
        s_cmp_lt_u32 s{sBi}, 20
        s_cselect_b32 s20, s10, s20
        s_cselect_b32 s21, s11, s21
        s_cselect_b32 s22, {D*DH*2}, s22
        s_cselect_b32 s37, 36, s37
        s_cselect_b32 s38, 0, s38
        s_cmp_lt_u32 s{sBi}, 19
        s_cselect_b32 s20, s8, s20
        s_cselect_b32 s21, s9, s21
        s_cmp_lt_u32 s{sBi}, 18
        s_cselect_b32 s20, s6, s20
        s_cselect_b32 s21, s7, s21
        s_cselect_b32 s22, {D*D*2}, s22
        s_cselect_b32 s37, 1152, s37
        s_cselect_b32 s38, s39, s38
        v_mad_u32_u24 v{vDma}, v{vRowl}, s37, v{vChunk16}
        s_lshl_b32 s39, s37, 4
        s_mul_i32 s40, s30, 9
        s_mul_i32 s42, s40, s39
        s_add_u32 s42, s42, s38
        s_and_b32 s43, s{sJ}, 3
        s_mul_i32 s43, s43, {BUF}
        s_lshl_b32 s40, s40, 10
        s_add_u32 s43, s43, s40
        """)
        if setup_only: return
        for i in range(9):
            if toreg is None:
                a.e(f"""
                s_mov_b32 m0, s43
                s_add_u32 s43, s43, 1024
                buffer_load_dwordx4 v{vDma}, s[20:23], s42 offen lds
                s_add_u32 s42, s42, s39
                """)
            else:
                a.e(f"""
                buffer_load_dwordx4 {vr(toreg+4*i,4)}, v{vDma}, s[20:23], s42 offen
                s_add_u32 s42, s42, s39
                """)
    stp.init(28, WS_END)
    stp.stamp()
    for i in range(18):
        a.e(f"""
        v_add_u32 v{vT[0]}, {64*i}, v{vL}
        v_mul_u32_u24 v{vT[1]}, 911, v{vT[0]}
        v_lshrrev_b32 v{vT[1]}, 16, v{vT[1]}
        v_mul_u32_u24 v{vT[2]}, 72, v{vT[1]}
        v_sub_u32 v{vT[2]}, v{vT[0]}, v{vT[2]}
        v_bfe_u32 v{vT[3]}, v{vT[1]}, 1, 3
        v_xor_b32 v{vT[2]}, v{vT[2]}, v{vT[3]}
        v_mul_u32_u24 v{vT[1]}, 1152, v{vT[1]}
        v_lshl_add_u32 v{xr[i]}, v{vT[2]}, 4, v{vT[1]}
        """)
    a.e(f"""
    s_lshl_b32 s39, s31, 7
    s_lshl_b32 s40, s28, 4
    s_add_u32 s39, s39, s40
    s_mul_i32 s39, s39, 1152
    s_mul_i32 s43, s28, {18*1024}
    """)
    for i in range(18):
        a.e(f"""
        s_mov_b32 m0, s43
        s_add_u32 s43, s43, 1024
        buffer_load_dwordx4 v{xr[i]}, s[16:19], s39 offen lds
        """)
    a.e("s_add_u32 s41, s33, s29")
    dma(41, 29, toreg=wpre)
    a.e("s_mov_b32 s56, s43")
    a.e("s_add_u32 s41, s41, 2\ns_add_u32 s52, s29, 2")
    dma(41, 52, toreg=wpre+36)
    a.e(f"""
    s_lshl_b32 s39, s28, 4
    v_add_u32 v{vT[0]}, s39, v{vL15}
    v_bfe_u32 v{vT[1]}, v{vL15}, 1, 3
    v_mul_u32_u24 v{vT[0]}, 1152, v{vT[0]}
    v_xor_b32 v{vT[2]}, v{vG}, v{vT[1]}
    v_xor_b32 v{vT[3]}, 4, v{vT[2]}
    v_lshl_add_u32 v{vXo[0]}, v{vT[2]}, 4, v{vT[0]}
    v_lshl_add_u32 v{vXo[1]}, v{vT[3]}, 4, v{vT[0]}
    """)
    for i in range(4): a.e(f"v_mov_b32 v{ones+i}, 0x3f803f80")
    a.e(f"""
    v_and_b32 v{vT[0]}, 3, v{vL}
    v_cmp_eq_u32 s[46:47], 1, v{vT[0]}
    v_cmp_eq_u32 s[48:49], 2, v{vT[0]}
    v_cmp_eq_u32 s[50:51], 3, v{vT[0]}
    v_lshrrev_b32 v{vT[1]}, 2, v{vL15}
    v_lshlrev_b32 v{vT[1]}, 4, v{vT[1]}
    v_add_u32 v{vT[1]}, v{vT[1]}, v{vL15}
    v_lshlrev_b32 v{vT[7]}, 2, v{vT[1]}
    s_waitcnt vmcnt(18)
    """)
    stp.stamp()
    for t in range(18):
        a.e(f"ds_read_b128 {vr(xr[t],4)}, v{vXo[t&1]} offset:{128*(t>>1)}")
    for t in range(18):
        a.e(f"s_waitcnt lgkmcnt({min(15,17-t)})")
        c0 = "0" if t == 0 else vr(acc, 4)
        c1 = "0" if t == 0 else vr(acc+4, 4)
        a.e(f"v_mfma_f32_16x16x32_bf16 {vr(acc,4)}, {vr(ones,4)}, {vr(xr[t],4)}, {c0}")
        a.e(f"v_mfma_f32_16x16x32_bf16 {vr(acc+4,4)}, {vr(xr[t],4)}, {vr(xr[t],4)}, {c1}")
    a.e("s_nop 7\ns_nop 3")
    q = acc+4
    a.e(f"""
    v_cndmask_b32 v{vT[0]}, v{q}, v{q+1}, s[46:47]
    v_cndmask_b32 v{vT[0]}, v{vT[0]}, v{q+2}, s[48:49]
    v_cndmask_b32 v{vT[0]}, v{vT[0]}, v{q+3}, s[50:51]
    ds_bpermute_b32 v{vT[4]}, v{vT[7]}, v{vT[0]}
    s_waitcnt lgkmcnt(0)
    """)
    ln_scalars(a, acc, vT[4], D, vT[2], vT[3], vT[0], vT[1], vT[5])
    for t in range(18):
        for i in range(4):
            w = xr[t] + i
            lo, hi = (vT[0], vT[1]) if not (i & 1) else (vT[6], vT[7])
            a.e(f"""
            v_lshlrev_b32 v{lo}, 16, v{w}
            v_and_b32 v{hi}, s45, v{w}
            v_fma_f32 v{lo}, v{lo}, v{vT[2]}, v{vT[3]}
            v_fma_f32 v{hi}, v{hi}, v{vT[2]}, v{vT[3]}
            v_cvt_pk_bf16_f32 v{w}, v{lo}, v{hi}
            """)
        a.e(f"ds_write_b128 v{vXo[t&1]}, {vr(xr[t],4)} offset:{128*(t>>1)}")
    a.e(f"""
    s_lshl_b32 s39, s30, 5
    v_add_u32 v{vT[0]}, s39, v{vL31}
    v_bfe_u32 v{vT[1]}, v{vL31}, 1, 3
    v_mul_u32_u24 v{vT[0]}, 1152, v{vT[0]}
    v_xor_b32 v{vT[2]}, v{vHH}, v{vT[1]}
    """)
    for i in range(4):
        a.e(f"v_xor_b32 v{vT[3]}, {2*i}, v{vT[2]}\nv_lshl_add_u32 v{vXo[i]}, v{vT[3]}, 4, v{vT[0]}")
    stp.stamp()
    a.e("s_waitcnt lgkmcnt(0)\ns_barrier")
    for t in range(18):
        a.e(f"ds_read_b128 {vr(xr[t],4)}, v{vXo[t&3]} offset:{128*(t>>2)}")
    a.e("s_waitcnt vmcnt(0)")
    tmpw = acc
    assert Wf[0] == acc + 16 and Wf[NS-1] + 4 == acc + 36 and st == acc + 36
    for i in range(68): a.e(f"v_mov_b32 v{tmpw+i}, v{wpre+i}")
    for i in range(4): a.e(f"v_mov_b32 v{vT[4+i]}, v{wpre+68+i}")
    for t in range(18, 36):
        a.e(f"ds_read_b128 {vr(xr[t],4)}, v{vXo[t&3]} offset:{128*(t>>2)}")
    a.e(f"""
    v_lshlrev_b32 v{vT[0]}, 4, v{vL}
    v_add_u32 v{vT[0]}, s56, v{vT[0]}
    v_add_u32 v{vT[1]}, {2*BUF}, v{vT[0]}
    s_waitcnt lgkmcnt(0)
    s_barrier
    """)
    for i in range(9):
        a.e(f"ds_write_b128 v{vT[0]}, {vr(tmpw+4*i,4)} offset:{1024*i}")
    for i in range(8):
        a.e(f"ds_write_b128 v{vT[1]}, {vr(tmpw+36+4*i,4)} offset:{1024*i}")
    a.e(f"ds_write_b128 v{vT[1]}, {vr(vT[4],4)} offset:{1024*8}")
    a.e("s_waitcnt lgkmcnt(0)")
    for i in range(32): a.e(f"v_mov_b32 v{st+i}, 0")
    a.e("s_barrier")
    stp.stamp()
    a.e("s_mov_b32 s35, s29")
    LOOP = "k1_loop"
    a.e(f"""
    s_cmp_eq_u32 s29, 0
    s_cbranch_scc1 {LOOP}
    """)
    a.e("s_barrier")
    a.label(LOOP)
    stp.stamp()
    a.e(f"""
    s_add_u32 s41, s33, s35
    s_and_b32 s39, s35, 3
    s_mul_i32 s39, s39, {BUF}
    v_add_u32 v{vWb}, s39, v{vW}
    s_setprio 3
    s_cmp_eq_u32 s41, 19
    s_cbranch_scc1 k1_mf_xa
    s_cmp_ge_u32 s41, 92
    s_cbranch_scc1 k1_mf_xa
    """)
    def reads(t):
        for h in range(2):
            a.e(f"ds_read_b64_tr_b16 {vr(Wf[t%NS]+2*h,2)}, v{vWb} offset:{t*1024+h*256}")
    def mfma_phase(wa):
        PD = NS - 1
        for t in range(PD): reads(t)
        for t in range(36):
            if t + PD <= 35: reads(t+PD)
            ahead = min(35, t + PD) - t
            a.e(f"s_waitcnt lgkmcnt({min(15, 2*ahead)})")
            c = "0" if t == 0 else vr(acc, 16)
            A, B = (vr(Wf[t%NS],4), vr(xr[t],4)) if wa else (vr(xr[t],4), vr(Wf[t%NS],4))
            a.e(f"v_mfma_f32_32x32x16_bf16 {vr(acc,16)}, {A}, {B}, {c}")
    mfma_phase(True)
    a.e("s_branch k1_mf_done")
    a.label("k1_mf_xa")
    mfma_phase(False)
    a.label("k1_mf_done")
    a.e("s_setprio 0")
    stp.stamp()
    a.e(f"""
    s_barrier
    s_add_u32 s52, s35, 4
    s_add_u32 s53, s33, s52
    """)
    dma(53, 52, setup_only=True)
    a.e("s_mov_b32 s58, s39\ns_mov_b32 s59, s42\ns_mov_b32 s57, s43\ns_cmp_ge_u32 s52, s34\ns_cselect_b32 s22, 0, s22")
    a.label("k1_nodma")
    stp.stamp()
    a.e(f"""
    s_nop 7
    s_nop 3
    {"s_branch k1_ep_done" if os.environ.get("X_NOEPI") else ""}
    s_cmp_lt_u32 s41, 18
    s_cbranch_scc1 k1_ep_q
    s_cmp_eq_u32 s41, 18
    s_cbranch_scc1 k1_ep_k
    s_cmp_eq_u32 s41, 19
    s_cbranch_scc1 k1_ep_v
    s_cmp_ge_u32 s41, 92
    s_cbranch_scc1 k1_ep_z2
    """)
    allacc = [acc+r for r in range(16)]
    class Hook:
        def __init__(self): self.n = 0
        def __call__(self):
            if self.n >= 9: return
            self.n += 1
            a.e(f"""
            s_mov_b32 m0, s57
            s_add_u32 s57, s57, 1024
            buffer_load_dwordx4 v{vDma}, s[20:23], s59 offen lds
            s_add_u32 s59, s59, s58
            """)
        def rest(self):
            while self.n < 9: self()
    def ep_end(nst, last=False):
        L = a.newlabel("k1w")
        extra = 2 if stp.en else 0
        a.e(f"s_waitcnt vmcnt({9+nst+extra})")
        if not last: a.e("s_branch k1_ep_done")
    def pack_all():
        for q in range(4):
            a.e(f"v_cvt_pk_bf16_f32 v{acc+2*q}, v{acc+4*q}, v{acc+4*q+1}")
            a.e(f"v_cvt_pk_bf16_f32 v{acc+2*q+1}, v{acc+4*q+2}, v{acc+4*q+3}")
    def store_wa(stride, sbase_code):
        a.e(f"""
        s_movk_i32 s39, {stride}
        v_lshlrev_b32 v{vT[0]}, 3, v{vHH}
        v_mad_u32_u24 v{vO[0]}, v{vL31}, s39, v{vT[0]}
        """)
        a.e(sbase_code)
        for q in range(4):
            a.e(f"buffer_store_dwordx2 {vr(acc+2*q,2)}, v{vO[0]}, s[24:27], s39 offen offset:{q*16}")
    hk = Hook()
    gelu_regs(a, allacc, vT[0:4], 44, vK0, hk)
    hk.rest()
    pack_all()
    store_wa(4608, f"""
    s_mul_i32 s39, s36, 4608
    s_sub_u32 s40, s41, 20
    s_lshl_b32 s40, s40, 6
    s_add_u32 s39, s39, s40
    s_add_u32 s39, s39, {WS_Z1}
    """)
    ep_end(4)
    a.label("k1_ep_q")
    Hook().rest()
    for r in range(16): a.e(f"v_mul_f32 v{acc+r}, 0x{f2u(DH ** -0.5 * math.log2(math.e)):08x}, v{acc+r}")
    pack_all()
    store_wa(1152, f"""
    s_mul_i32 s39, s36, 1152
    s_lshl_b32 s40, s41, 6
    s_add_u32 s39, s39, s40
    s_add_u32 s39, s39, {WS_Q}
    """)
    ep_end(4)
    a.label("k1_ep_k")
    Hook().rest()
    pack_all()
    a.e(f"""
    v_lshlrev_b32 v{vT[0]}, 3, v{vHH}
    v_lshl_add_u32 v{vO[0]}, v{vL31}, 5, v{vT[0]}
    v_lshlrev_b32 v{vO[1]}, 2, v{vL31}
    s_lshr_b32 s39, s36, 5
    s_mul_i32 s39, s39, 2304
    s_add_u32 s39, s39, {WS_KV}
    """)
    for q in range(2):
        a.e(f"buffer_store_dwordx2 {vr(acc+2*q,2)}, v{vO[0]}, s[24:27], s39 offen offset:{q*16}")
    a.e(f"""
    s_mov_b64 s[54:55], exec
    s_mov_b32 exec_hi, 0
    buffer_store_dword v{acc+4}, v{vO[1]}, s[24:27], s39 offen offset:1024
    s_mov_b64 exec, s[54:55]
    """)
    ep_end(3)
    a.label("k1_ep_v")
    Hook().rest()
    pack_all()
    a.e(f"""
    s_movk_i32 s39, 288
    v_mul_u32_u24 v{vT[0]}, s39, v{vHH}
    v_lshl_add_u32 v{vO[0]}, v{vL31}, 4, v{vT[0]}
    s_lshr_b32 s39, s36, 5
    s_mul_i32 s39, s39, 2304
    s_add_u32 s39, s39, {WS_KV+1152}
    v_cmp_gt_u32 vcc, 18, v{vL31}
    s_and_saveexec_b64 s[54:55], vcc
    """)
    for m in range(2):
        a.e(f"buffer_store_dwordx4 {vr(acc+4*m,4)}, v{vO[0]}, s[24:27], s39 offen offset:{m*576}")
    a.e("s_mov_b64 exec, s[54:55]")
    ep_end(2)
    a.label("k1_ep_z2")
    hk = Hook()
    gelu_regs(a, allacc, vT[0:4], 44, vK0, hk)
    hk.rest()
    for r in range(16):
        x = acc+r
        a.e(f"v_add_f32 v{st+r*2}, v{st+r*2}, v{x}")
        a.e(f"v_fma_f32 v{st+r*2+1}, v{x}, v{x}, v{st+r*2+1}")
    pack_all()
    a.e(f"""
    v_lshlrev_b32 v{vT[0]}, 3, v{vHH}
    v_lshl_add_u32 v{vO[0]}, v{vL31}, 12, v{vT[0]}
    s_sub_u32 s40, s41, 92
    s_lshl_b32 s40, s40, 17
    s_lshl_b32 s39, s36, 1
    s_add_u32 s39, s39, s40
    s_add_u32 s39, s39, {WS_Z2T}
    """)
    for q in range(4):
        a.e(f"buffer_store_dwordx2 {vr(acc+2*q,2)}, v{vO[0]}, s[24:27], s39 offen offset:{q*16}")
    ep_end(4, last=True)
    a.label("k1_ep_done")
    stp.stamp()
    a.e(f"""
    s_add_u32 s39, s35, 1
    s_cmp_ge_u32 s39, s34
    s_cbranch_scc1 k1_nobar
    s_barrier
    """)
    a.label("k1_nobar")
    a.e(f"""
    s_add_u32 s35, s35, 2
    s_cmp_lt_u32 s35, s34
    s_cbranch_scc1 {LOOP}
    s_cmp_lt_u32 s32, 8
    s_cbranch_scc1 {END}
    """)
    for sh in (8, 4, 2, 1):
        for i in range(32):
            a.e(f"v_add_f32_dpp v{st+i}, v{st+i}, v{st+i} row_ror:{sh} row_mask:0xf bank_mask:0xf")
        a.e("s_nop 1")
    for i in range(32):
        a.e(f"ds_swizzle_b32 v{xr[0]+i}, v{st+i} offset:0x401F")
    a.e("s_waitcnt lgkmcnt(0)")
    for i in range(32):
        a.e(f"v_add_f32 v{st+i}, v{st+i}, v{xr[0]+i}")
    a.e(f"""
    v_lshlrev_b32 v{vO[0]}, 5, v{vHH}
    s_sub_u32 s39, s32, 8
    s_lshl_b32 s39, s39, 1
    s_add_u32 s39, s39, s29
    s_lshl_b32 s39, s39, 14
    s_lshl_b32 s40, s36, 3
    s_add_u32 s39, s39, s40
    s_add_u32 s39, s39, {WS_STAT}
    v_cmp_eq_u32 vcc, 0, v{vL31}
    s_and_saveexec_b64 s[54:55], vcc
    """)
    for q in range(4):
        a.e(f"buffer_store_dwordx4 {vr(st+q*8,4)}, v{vO[0]}, s[24:27], s39 offen offset:{q*64}")
        a.e(f"buffer_store_dwordx4 {vr(st+q*8+4,4)}, v{vO[0]}, s[24:27], s39 offen offset:{q*64+16}")
    a.label(END)
    a.e("s_endpgm")
    a.end_kernel(name, nv)
    print("k1 vgprs", nv)
```

```python
from asmlib import *
from layout import *
from k1 import ln_scalars
import math, os

def gen_k2(a):
    name = "k2_kernel"
    KVB = 2304
    LDS_ST = 64*KVB
    a.begin_kernel(name, 256, 512, LDS_ST + 1024)
    va = VAlloc(1)
    vL = va.get(); vL31 = va.get(); vHH = va.get()
    vT0 = va.get(8, 4); vT = [vT0+i for i in range(8)]
    vKa = va.get(); vK2a = va.get(); vVa = va.get()
    vM = va.get(); vMc = va.get(); vMx = va.get(); vAl = va.get()
    qf0 = va.get(4, 4); qf1 = va.get(4, 4)
    Sb = [[va.get(16, 4) for b in range(2)] for p in range(2)]
    P = va.get(16, 4)
    O = va.get(16, 4)
    kf0 = [va.get(4, 4) for b in range(2)]
    kf1 = [va.get(4, 4) for b in range(2)]
    vf = [[va.get(4, 4) for m in range(2)] for b in range(2)]
    nrm = va.get(16, 4)
    nv = va.n
    END = "k2_end"
    CS = DH ** -0.5 * math.log2(math.e)
    a.e(f"""
    s_cmp_ge_u32 s2, 256
    s_cbranch_scc1 {END}
    s_load_dwordx2 s[14:15], s[0:1], 96
    v_lshrrev_b32 v{vT[0]}, 6, v0
    v_and_b32 v{vL}, 63, v0
    s_nop 0
    v_readfirstlane_b32 s28, v{vT[0]}
    v_and_b32 v{vL31}, 31, v{vL}
    v_lshrrev_b32 v{vHH}, 5, v{vL}
    s_mov_b32 s44, 0x{f2u(CS):08x}
    s_mov_b32 s45, 0xffff0000
    s_waitcnt lgkmcnt(0)
    s_mov_b32 s24, s14
    s_mov_b32 s25, s15
    s_mov_b32 s26, 0x10000000
    s_mov_b32 s27, 0x00020000
    """)
    a.e(f"""
    v_lshlrev_b32 v{vT[0]}, 4, v{vL}
    s_lshl_b32 s43, s28, 10
    s_add_u32 s42, s43, {WS_KV}
    """)
    for i in range(18):
        a.e(f"""
        s_mov_b32 m0, s43
        s_add_u32 s43, s43, 8192
        buffer_load_dwordx4 v{vT[0]}, s[24:27], s42 offen lds
        s_add_u32 s42, s42, 8192
        """)
    a.e(f"""
    s_and_b32 s30, s2, 3
    s_lshl_b32 s30, s30, 3
    s_add_u32 s30, s30, s28
    s_lshr_b32 s31, s2, 2
    s_lshl_b32 s31, s31, 5
    s_mul_i32 s39, s31, 1152
    s_mul_i32 s40, s30, 36
    s_add_u32 s39, s39, s40
    s_add_u32 s39, s39, {WS_Q}
    s_movk_i32 s40, 1152
    v_lshlrev_b32 v{vT[1]}, 4, v{vHH}
    v_mad_u32_u24 v{vT[1]}, v{vL31}, s40, v{vT[1]}
    v_mul_u32_u24 v{vT[2]}, s40, v{vL31}
    buffer_load_dwordx4 {vr(qf0,4)}, v{vT[1]}, s[24:27], s39 offen
    buffer_load_dword v{qf1}, v{vT[2]}, s[24:27], s39 offen offset:32
    """)
    a.e(f"""
    s_lshr_b32 s32, s2, 4
    s_and_b32 s33, s2, 15
    s_cmp_ge_u32 s28, 2
    s_cbranch_scc1 k2_nostat
    v_lshlrev_b32 v{vT[3]}, 3, v0
    s_lshl_b32 s39, s33, 10
    s_add_u32 s39, s39, {WS_STAT}
    """)
    sreg = Sb[0][0]
    assert Sb[0][1] == Sb[0][0] + 16
    for p in range(16):
        a.e(f"buffer_load_dwordx2 {vr(sreg+2*p,2)}, v{vT[3]}, s[24:27], s39 offen\ns_add_u32 s39, s39, 16384")
    a.e("s_waitcnt vmcnt(0)")
    for p in range(1, 16):
        a.e(f"v_add_f32 v{sreg}, v{sreg}, v{sreg+2*p}\nv_add_f32 v{sreg+1}, v{sreg+1}, v{sreg+2*p+1}")
    ln_scalars(a, sreg, sreg+1, FH, sreg+2, sreg+3, vT[4], vT[5], vT[6])
    a.e(f"""
    v_add_u32 v{vT[3]}, {LDS_ST}, v{vT[3]}
    ds_write_b64 v{vT[3]}, {vr(sreg+2,2)}
    s_waitcnt lgkmcnt(0)
    """)
    a.label("k2_nostat")
    a.e("s_barrier")
    a.e(f"""
    v_and_b32 v{vT[3]}, 15, v0
    v_lshrrev_b32 v{vT[4]}, 4, v0
    v_lshlrev_b32 v{vT[5]}, 6, v{vT[3]}
    v_add_u32 v{vT[5]}, {LDS_ST}, v{vT[5]}
    """)
    for i in range(4):
        a.e(f"ds_read_b128 {vr(nrm+4*i,4)}, v{vT[5]} offset:{16*i}")
    a.e(f"""
    v_lshlrev_b32 v{vT[4]}, 12, v{vT[4]}
    v_lshl_add_u32 v{vT[4]}, v{vT[3]}, 4, v{vT[4]}
    s_mul_i32 s39, s32, {144*4096}
    s_lshl_b32 s40, s33, 8
    s_add_u32 s39, s39, s40
    s_add_u32 s40, s39, {WS_Z2N}
    s_add_u32 s39, s39, {WS_Z2T}
    """)
    zr = Sb[1][0]
    for p in range(4):
        a.e(f"buffer_load_dwordx4 {vr(zr+4*p,4)}, v{vT[4]}, s[24:27], s39 offen\ns_add_u32 s39, s39, {32*4096}")
    a.e(f"""
    s_cmp_ge_u32 s28, 4
    s_cbranch_scc1 k2_n4
    buffer_load_dwordx4 {vr(zr+16,4)}, v{vT[4]}, s[24:27], s39 offen
    """)
    a.label("k2_n4")
    a.e("s_waitcnt vmcnt(0) lgkmcnt(0)")
    def norm_chunk(p):
        for i in range(4):
            w = zr + 4*p + i
            a.e(f"""
            v_lshlrev_b32 v{vT[0]}, 16, v{w}
            v_and_b32 v{vT[1]}, s45, v{w}
            v_fma_f32 v{vT[0]}, v{vT[0]}, v{nrm+4*i}, v{nrm+4*i+1}
            v_fma_f32 v{vT[1]}, v{vT[1]}, v{nrm+4*i+2}, v{nrm+4*i+3}
            v_cvt_pk_bf16_f32 v{w}, v{vT[0]}, v{vT[1]}
            """)
        a.e(f"buffer_store_dwordx4 {vr(zr+4*p,4)}, v{vT[4]}, s[24:27], s40 offen\ns_add_u32 s40, s40, {32*4096}")
    for p in range(4): norm_chunk(p)
    a.e("s_cmp_ge_u32 s28, 4\ns_cbranch_scc1 k2_n5")
    norm_chunk(4)
    a.label("k2_n5")
    a.e(f"""
    v_cmp_gt_u32 vcc, 32, v{vL}
    v_mov_b32 v{qf1+1}, 0
    v_mov_b32 v{qf1+2}, 0
    v_mov_b32 v{qf1+3}, 0
    v_cndmask_b32 v{qf1}, 0, v{qf1}, vcc
    v_lshlrev_b32 v{vKa}, 4, v{vHH}
    v_lshl_add_u32 v{vKa}, v{vL31}, 5, v{vKa}
    v_lshlrev_b32 v{vK2a}, 2, v{vL31}
    s_movk_i32 s39, 288
    v_mul_u32_u24 v{vVa}, s39, v{vHH}
    v_lshl_add_u32 v{vVa}, v{vL31}, 4, v{vVa}
    v_mov_b32 v{vM}, 0xff800000
    s_mov_b32 s46, -1
    s_mov_b32 s47, 0
    s_mov_b32 s48, 0x3ffff
    s_mov_b32 s49, 0x3ffff
    v_cmp_eq_u32 vcc, 18, v{vL31}
    v_mov_b32 v{vT[0]}, 0x3f803f80
    """)
    for b in range(2):
        for i in range(4): a.e(f"v_mov_b32 v{kf1[b]+i}, 0")
        for m in range(2):
            for i in range(4): a.e(f"v_cndmask_b32 v{vf[b][m]+i}, 0, v{vT[0]}, vcc")
    for i in range(16): a.e(f"v_mov_b32 v{O+i}, 0")
    a.e("s_waitcnt vmcnt(0)\ns_barrier")
    def k_reads(off):
        for b in range(2):
            a.e(f"ds_read_b128 {vr(kf0[b],4)}, v{vKa} offset:{off + b*KVB}")
        a.e("s_mov_b64 exec, s[46:47]")
        for b in range(2):
            a.e(f"ds_read_b32 v{kf1[b]}, v{vK2a} offset:{off + b*KVB + 1024}")
        a.e("s_mov_b64 exec, -1")
    def v_reads(off):
        a.e("s_mov_b64 exec, s[48:49]")
        for b in range(2):
            for m in range(2):
                a.e(f"ds_read_b128 {vr(vf[b][m],4)}, v{vVa} offset:{off + b*KVB + 1152 + m*576}")
        a.e("s_mov_b64 exec, -1")
    def qk(par):
        for b in range(2):
            a.e(f"v_mfma_f32_32x32x16_bf16 {vr(Sb[par][b],16)}, {vr(kf0[b],4)}, {vr(qf0,4)}, 0")
        for b in range(2):
            a.e(f"v_mfma_f32_32x32x16_bf16 {vr(Sb[par][b],16)}, {vr(kf1[b],4)}, {vr(qf1,4)}, {vr(Sb[par][b],16)}")
    def softmax_pv(par):
        sv = [Sb[par][b]+r for b in range(2) for r in range(16)]
        a.e(f"v_max3_f32 v{vMx}, v{sv[0]}, v{sv[1]}, v{sv[2]}")
        a.e(f"v_max3_f32 v{vT[0]}, v{sv[3]}, v{sv[4]}, v{sv[5]}")
        i = 6
        tog = 0
        while i + 1 < 32:
            d = vMx if tog == 0 else vT[0]
            a.e(f"v_max3_f32 v{d}, v{d}, v{sv[i]}, v{sv[i+1]}")
            i += 2; tog ^= 1
        a.e(f"v_max3_f32 v{vMx}, v{vMx}, v{vT[0]}, v{vM}")
        a.e(f"""
        v_mov_b32 v{vT[1]}, v{vMx}
        s_nop 1
        v_permlane32_swap_b32 v{vT[1]}, v{vMx}
        s_nop 1
        v_max_f32 v{vMx}, v{vMx}, v{vT[1]}
        v_sub_f32 v{vAl}, v{vM}, v{vMx}
        v_mul_f32 v{vAl}, s44, v{vAl}
        v_exp_f32 v{vAl}, v{vAl}
        v_mov_b32 v{vM}, v{vMx}
        v_mul_f32 v{vMc}, s44, v{vMx}
        """)
        for x in sv: a.e(f"v_fma_f32 v{x}, v{x}, s44, -v{vMc}")
        for r in range(12): a.e(f"v_mul_f32 v{O+r}, v{O+r}, v{vAl}")
        for x in sv: a.e(f"v_exp_f32 v{x}, v{x}")
        a.e("s_nop 0")
        for i in range(16): a.e(f"v_cvt_pk_bf16_f32 v{P+i}, v{sv[2*i]}, v{sv[2*i+1]}")
        a.e("s_waitcnt lgkmcnt(0)\ns_nop 0")
        for b in range(2):
            for m in range(2):
                a.e(f"v_mfma_f32_32x32x16_bf16 {vr(O,16)}, {vr(vf[b][m],4)}, {vr(P+8*b+4*m,4)}, {vr(O,16)}")
    k_reads(0)
    a.e("s_waitcnt lgkmcnt(0)")
    qk(0)
    k_reads(2*KVB)
    v_reads(0)
    a.e("s_mov_b32 s50, 0")
    a.label("k2_loop")
    for par in range(2):
        a.e("s_waitcnt lgkmcnt(4)")
        qk(par ^ 1)
        softmax_pv(par)
        a.e(f"""
        v_add_u32 v{vKa}, {2*KVB}, v{vKa}
        v_add_u32 v{vK2a}, {2*KVB}, v{vK2a}
        v_add_u32 v{vVa}, {2*KVB}, v{vVa}
        """)
        k_reads(2*KVB)
        v_reads(0)
    a.e(f"""
    s_add_u32 s50, s50, 2
    s_cmp_lt_u32 s50, 32
    s_cbranch_scc1 k2_loop
    s_waitcnt lgkmcnt(0)
    s_nop 7
    s_nop 7
    """)
    a.e(f"""
    v_mov_b32 v{vT[0]}, v{O+10}
    v_mov_b32 v{vT[1]}, v{O+10}
    s_nop 1
    v_permlane32_swap_b32 v{vT[1]}, v{vT[0]}
    s_nop 1
    v_cmp_gt_u32 vcc, 32, v{vL}
    s_nop 1
    v_cndmask_b32 v{vT[0]}, v{vT[1]}, v{O+10}, vcc
    v_rcp_f32 v{vT[0]}, v{vT[0]}
    s_nop 0
    """)
    for r in range(10): a.e(f"v_mul_f32 v{O+r}, v{O+r}, v{vT[0]}")
    for i in range(5): a.e(f"v_cvt_pk_bf16_f32 v{P+i}, v{O+2*i}, v{O+2*i+1}")
    a.e(f"""
    s_movk_i32 s40, 5760
    v_lshlrev_b32 v{vT[1]}, 3, v{vHH}
    v_mad_u32_u24 v{vT[1]}, v{vL31}, s40, v{vT[1]}
    s_mul_i32 s39, s31, 5760
    s_mul_i32 s40, s30, 36
    s_add_u32 s39, s39, s40
    s_add_u32 s39, s39, {WS_OH}
    buffer_store_dwordx2 {vr(P,2)}, v{vT[1]}, s[24:27], s39 offen
    buffer_store_dwordx2 {vr(P+2,2)}, v{vT[1]}, s[24:27], s39 offen offset:16
    s_mov_b64 exec, s[46:47]
    buffer_store_dword v{P+4}, v{vT[1]}, s[24:27], s39 offen offset:32
    """)
    a.label(END)
    a.e("s_endpgm")
    a.end_kernel(name, nv)
    print("k2 vgprs", nv)
```

```python
from asmlib import *
from layout import *
import os

def gen_k3(a):
    name = "k3_kernel"
    STG = 34816; BOFF = 18432
    NSTG = 32
    a.begin_kernel(name, 256, 512, 4*STG)
    va = VAlloc(1)
    vL = va.get(); vL15 = va.get(); vG = va.get()
    vT0 = va.get(8, 4); vT = [vT0+i for i in range(8)]
    vD = [va.get(), va.get(), va.get()]
    vA = [va.get(), va.get()]; vB = [va.get(), va.get()]
    vZ = [va.get(), va.get()]; vH = [va.get(), va.get()]; vBs = [va.get(), va.get()]
    acc = [[va.get(4, 4) for j in range(2)] for i in range(9)]
    fa = [[va.get(4, 4) for i in range(9)] for s in range(2)]
    fb = [[va.get(4, 4) for j in range(2)] for s in range(2)]
    z1r = [[va.get(2, 2) for j in range(2)] for i in range(5)]
    nv = va.n
    END = "k3_end"
    a.e(f"""
    s_cmp_ge_u32 s2, 256
    s_cbranch_scc1 {END}
    s_load_dwordx4 s[4:7], s[0:1], 56
    s_load_dwordx2 s[14:15], s[0:1], 96
    v_lshrrev_b32 v{vT[0]}, 6, v0
    v_and_b32 v{vL}, 63, v0
    s_nop 0
    v_readfirstlane_b32 s28, v{vT[0]}
    v_and_b32 v{vL15}, 15, v{vL}
    v_lshrrev_b32 v{vG}, 4, v{vL}
    s_and_b32 s29, s28, 3
    s_lshr_b32 s30, s28, 2
    s_and_b32 s39, s2, 7
    s_lshr_b32 s40, s2, 3
    s_and_b32 s41, s39, 3
    s_lshl_b32 s41, s41, 2
    s_and_b32 s42, s40, 3
    s_add_u32 s31, s41, s42
    s_lshr_b32 s41, s39, 2
    s_lshl_b32 s41, s41, 3
    s_lshr_b32 s42, s40, 2
    s_add_u32 s32, s41, s42
    s_mul_i32 s33, s31, 144
    s_lshl_b32 s34, s32, 7
    """)
    a.e(f"""
    v_lshrrev_b32 v{vT[0]}, 3, v{vL}
    v_and_b32 v{vT[1]}, 7, v{vL}
    v_lshrrev_b32 v{vT[2]}, 1, v{vT[0]}
    v_xor_b32 v{vT[1]}, v{vT[1]}, v{vT[2]}
    v_lshlrev_b32 v{vT[0]}, 12, v{vT[0]}
    v_lshl_add_u32 v{vD[0]}, v{vT[1]}, 4, v{vT[0]}
    v_xor_b32 v{vD[1]}, 64, v{vD[0]}
    s_and_b32 s39, s28, 1
    s_lshl_b32 s39, s39, 6
    v_xor_b32 v{vD[2]}, s39, v{vD[0]}
    """)
    a.e(f"""
    s_lshl_b32 s39, s30, 2
    v_add_u32 v{vT[0]}, s39, v{vG}
    v_bfe_u32 v{vT[1]}, v{vL15}, 1, 3
    v_xor_b32 v{vT[0]}, v{vT[0]}, v{vT[1]}
    v_lshlrev_b32 v{vT[0]}, 4, v{vT[0]}
    v_lshl_add_u32 v{vA[0]}, v{vL15}, 7, v{vT[0]}
    v_add_u32 v{vA[1]}, {2*STG}, v{vA[0]}
    s_lshl_b32 s39, s29, 12
    s_add_u32 s39, s39, {BOFF}
    v_add_u32 v{vB[0]}, s39, v{vA[0]}
    v_add_u32 v{vB[1]}, {2*STG}, v{vB[0]}
    s_waitcnt lgkmcnt(0)
    s_mov_b32 s16, s4
    s_mov_b32 s17, s5
    s_mov_b32 s18, {S*S*2}
    s_mov_b32 s19, 0x00020000
    s_mov_b32 s20, s6
    s_mov_b32 s21, s7
    s_mov_b32 s22, {S*2}
    s_mov_b32 s23, 0x00020000
    s_mov_b32 s24, s14
    s_mov_b32 s25, s15
    s_mov_b32 s26, 0x10000000
    s_mov_b32 s27, 0x00020000
    """)
    a.e(f"""
    s_lshl_b32 s39, s28, 4
    s_add_u32 s40, s33, s39
    s_lshl_b32 s44, s40, 12
    s_add_u32 s44, s44, {WS_Z2N}
    s_lshl_b32 s41, s28, 3
    s_add_u32 s41, s41, 128
    s_add_u32 s41, s41, s33
    s_lshl_b32 s45, s41, 12
    s_add_u32 s45, s45, {WS_Z2N}
    s_add_u32 s40, s34, s39
    s_lshl_b32 s46, s40, 12
    s_lshl_b32 s47, s28, 11
    s_lshl_b32 s48, s28, 10
    s_add_u32 s48, s48, {16*1024}
    s_add_u32 s49, s47, {BOFF}
    """)
    def dma(stage):
        sl = (stage & 3) * STG
        k = stage * 128
        L = a.newlabel("k3d")
        a.e(f"""
        s_add_u32 m0, s47, {sl}
        s_add_u32 s50, s44, {k}
        buffer_load_dwordx4 v{vD[0]}, s[24:27], s50 offen lds
        s_add_u32 m0, s47, {sl+1024}
        s_add_u32 s50, s44, {k+8*4096}
        buffer_load_dwordx4 v{vD[1]}, s[24:27], s50 offen lds
        s_add_u32 m0, s49, {sl}
        s_add_u32 s50, s46, {k}
        buffer_load_dwordx4 v{vD[0]}, s[16:19], s50 offen lds
        s_add_u32 m0, s49, {sl+1024}
        s_add_u32 s50, s46, {k+8*4096}
        buffer_load_dwordx4 v{vD[1]}, s[16:19], s50 offen lds
        s_cmp_ge_u32 s28, 2
        s_cbranch_scc1 {L}
        s_add_u32 m0, s48, {sl}
        s_add_u32 s50, s45, {k}
        buffer_load_dwordx4 v{vD[2]}, s[24:27], s50 offen lds
        {L}:
        """)
    def reads(stage):
        st = stage & 1
        sl = stage & 3
        base = sl >> 1; off = (sl & 1) * STG
        for j in range(2):
            a.e(f"ds_read_b128 {vr(fb[st][j],4)}, v{vB[base]} offset:{off + j*2048}")
        for i in range(9):
            a.e(f"ds_read_b128 {vr(fa[st][i],4)}, v{vA[base]} offset:{off + i*2048}")
    for s_ in range(3): dma(s_)
    a.e("s_waitcnt vmcnt(8)\ns_barrier")
    reads(0)
    for i in range(NSTG):
        if i + 1 < NSTG:
            rem = 4 if i + 2 < NSTG else 0
            a.e(f"s_waitcnt vmcnt({rem})\ns_barrier")
            reads(i+1)
            if i + 3 < NSTG: dma(i+3)
            a.e("s_waitcnt lgkmcnt(11)")
        else:
            a.e("s_waitcnt lgkmcnt(0)")
        st = i & 1
        for ii in range(9):
            for j in range(2):
                c = "0" if i == 0 else vr(acc[ii][j], 4)
                a.e(f"v_mfma_f32_16x16x32_bf16 {vr(acc[ii][j],4)}, {vr(fa[st][ii],4)}, {vr(fb[st][j],4)}, {c}")
    a.e(f"""
    s_lshl_b32 s39, s29, 5
    s_add_u32 s39, s39, s34
    v_add_u32 v{vT[0]}, s39, v{vL15}
    v_lshlrev_b32 v{vT[1]}, 3, v{vG}
    s_movk_i32 s40, 4608
    v_mad_u32_u24 v{vZ[0]}, v{vT[0]}, s40, v{vT[1]}
    v_add_u32 v{vZ[1]}, {16*4608}, v{vZ[0]}
    s_movk_i32 s40, 5760
    v_mad_u32_u24 v{vH[0]}, v{vT[0]}, s40, v{vT[1]}
    v_add_u32 v{vH[1]}, {16*5760}, v{vH[0]}
    v_lshlrev_b32 v{vT[0]}, 1, v{vT[0]}
    buffer_load_ushort v{vBs[0]}, v{vT[0]}, s[20:23], 0 offen
    buffer_load_ushort v{vBs[1]}, v{vT[0]}, s[20:23], 0 offen offset:32
    s_mul_i32 s41, s30, 160
    s_lshl_b32 s42, s33, 1
    s_add_u32 s42, s42, s41
    s_add_u32 s43, s42, {WS_OH + 1152}
    s_add_u32 s42, s42, {WS_Z1}
    """)
    for ii in range(5):
        for j in range(2):
            if ii == 4:
                if j == 0: a.e("s_cmp_eq_u32 s30, 1\ns_cbranch_scc1 k3_z4")
            a.e(f"buffer_load_dwordx2 {vr(z1r[ii][j],2)}, v{vZ[j]}, s[24:27], s42 offen offset:{ii*32}")
    a.label("k3_z4")
    a.e(f"""
    s_barrier
    v_lshlrev_b32 v{vT[0]}, 4, v{vL}
    s_mul_i32 s39, s28, 10240
    v_add_u32 v{vT[1]}, s39, v{vT[0]}
    s_xor_b32 s40, s28, 4
    s_mul_i32 s40, s40, 10240
    v_add_u32 v{vT[2]}, s40, v{vT[0]}
    s_nop 4
    s_cmp_eq_u32 s30, 1
    s_cbranch_scc1 k3_w1
    """)
    for i in range(5, 9):
        for j in range(2):
            a.e(f"ds_write_b128 v{vT[1]}, {vr(acc[i][j],4)} offset:{((i-5)*2+j)*1024}")
    a.e("s_waitcnt lgkmcnt(0)\ns_barrier")
    for i in range(5):
        for j in range(2):
            a.e(f"ds_read_b128 {vr(fa[0][i] if j==0 else fa[1][i],4)}, v{vT[2]} offset:{(i*2+j)*1024}")
    def fin(tiles):
        a.e("s_waitcnt vmcnt(0) lgkmcnt(0)")
        for j in range(2):
            a.e(f"v_lshlrev_b32 v{vBs[j]}, 16, v{vBs[j]}")
        for ii, i in enumerate(tiles):
            for j in range(2):
                o = fa[j][ii]
                ac = acc[i][j]
                z = z1r[ii][j]
                for r in range(4):
                    a.e(f"v_add_f32 v{ac+r}, v{ac+r}, v{o+r}")
                for r in range(4):
                    a.e(f"v_add_f32 v{ac+r}, v{ac+r}, v{vBs[j]}")
                a.e(f"""
                v_lshlrev_b32 v{vT[4]}, 16, v{z}
                v_and_b32 v{vT[5]}, 0xffff0000, v{z}
                v_lshlrev_b32 v{vT[6]}, 16, v{z+1}
                v_and_b32 v{vT[7]}, 0xffff0000, v{z+1}
                """)
                for r in range(4):
                    a.e(f"v_mul_f32 v{ac+r}, v{ac+r}, v{vT[4+r]}")
                a.e(f"""
                v_cvt_pk_bf16_f32 v{ac}, v{ac}, v{ac+1}
                v_cvt_pk_bf16_f32 v{ac+1}, v{ac+2}, v{ac+3}
                buffer_store_dwordx2 {vr(ac,2)}, v{vH[j]}, s[24:27], s43 offen offset:{ii*32}
                """)
    fin(range(5))
    a.e(f"s_branch {END}")
    a.label("k3_w1")
    for i in range(5):
        for j in range(2):
            a.e(f"ds_write_b128 v{vT[1]}, {vr(acc[i][j],4)} offset:{(i*2+j)*1024}")
    a.e("s_waitcnt lgkmcnt(0)\ns_barrier")
    for i in range(4):
        for j in range(2):
            a.e(f"ds_read_b128 {vr(fa[j][i],4)}, v{vT[2]} offset:{(i*2+j)*1024}")
    fin(range(5, 9))
    a.label(END)
    a.e("s_endpgm")
    a.end_kernel(name, nv)
    print("k3 vgprs", nv)
```

```python
from asmlib import *
from layout import *
import os

def gen_k4(a):
    name = "k4_kernel"
    STG = 20480; WOFF = 8192
    NSLOT = 6
    NSTG = 45
    a.begin_kernel(name, 192, 256, NSLOT*STG)
    va = VAlloc(1)
    vL = va.get(); vL15 = va.get(); vG = va.get()
    vT0 = va.get(8, 4); vT = [vT0+i for i in range(8)]
    vDA = [va.get(), va.get()]
    vDW = [va.get(), va.get(), va.get()]
    vA = [[va.get() for p in range(2)] for h in range(2)]
    vW = [va.get(), va.get()]
    vX = va.get();
    acc = [[va.get(4, 4) for j in range(2)] for i in range(3)]
    fa = [[[va.get(4, 4) for j in range(2)] for k in range(2)] for s in range(2)]
    fw = [[[va.get(4, 4) for i in range(3)] for k in range(2)] for s in range(2)]
    xr = [[va.get(2, 2) for j in range(2)] for i in range(3)]
    nv = va.n
    END = "k4_end"
    a.e(f"""
    s_cmp_ge_u32 s2, 192
    s_cbranch_scc1 {END}
    s_load_dwordx2 s[4:5], s[0:1], 0
    s_load_dwordx2 s[6:7], s[0:1], 32
    s_load_dwordx4 s[8:11], s[0:1], 72
    s_load_dwordx2 s[14:15], s[0:1], 96
    v_lshrrev_b32 v{vT[0]}, 6, v0
    v_and_b32 v{vL}, 63, v0
    s_nop 0
    v_readfirstlane_b32 s28, v{vT[0]}
    v_and_b32 v{vL15}, 15, v{vL}
    v_lshrrev_b32 v{vG}, 4, v{vL}
    s_and_b32 s29, s28, 1
    s_lshr_b32 s30, s28, 1
    """)
    a.e(f"""
    s_and_b32 s39, s2, 7
    s_lshr_b32 s40, s2, 3
    s_lshl_b32 s39, s39, 2
    s_and_b32 s41, s40, 3
    s_add_u32 s31, s39, s41
    s_lshr_b32 s32, s40, 2
    s_lshl_b32 s33, s31, 6
    s_mul_i32 s34, s32, 96
    """)
    a.e(f"""
    v_lshrrev_b32 v{vT[0]}, 3, v{vL}
    v_and_b32 v{vT[1]}, 7, v{vL}
    v_lshrrev_b32 v{vT[2]}, 1, v{vT[0]}
    v_xor_b32 v{vT[1]}, v{vT[1]}, v{vT[2]}
    v_mul_u32_u24 v{vT[0]}, 5760, v{vT[0]}
    v_lshl_add_u32 v{vDA[0]}, v{vT[1]}, 4, v{vT[0]}
    v_xor_b32 v{vT[1]}, 4, v{vT[1]}
    v_lshl_add_u32 v{vDA[1]}, v{vT[1]}, 4, v{vT[0]}
    """)
    for i in range(3):
        a.e(f"""
        v_add_u32 v{vT[0]}, {64*i}, v{vL}
        v_mul_u32_u24 v{vT[1]}, 5462, v{vT[0]}
        v_lshrrev_b32 v{vT[1]}, 16, v{vT[1]}
        v_mul_u32_u24 v{vT[2]}, 12, v{vT[1]}
        v_sub_u32 v{vT[2]}, v{vT[0]}, v{vT[2]}
        v_bfe_u32 v{vT[3]}, v{vT[1]}, 3, 1
        v_lshlrev_b32 v{vT[3]}, 1, v{vT[3]}
        v_xor_b32 v{vT[2]}, v{vT[2]}, v{vT[3]}
        v_mul_u32_u24 v{vT[1]}, 1152, v{vT[1]}
        v_lshl_add_u32 v{vDW[i]}, v{vT[2]}, 4, v{vT[1]}
        """)
    a.e(f"""
    v_bfe_u32 v{vT[1]}, v{vL15}, 1, 3
    v_xor_b32 v{vT[0]}, v{vG}, v{vT[1]}
    s_lshl_b32 s39, s29, 5
    v_add_u32 v{vT[2]}, s39, v{vL15}
    v_lshlrev_b32 v{vT[2]}, 7, v{vT[2]}
    v_lshl_add_u32 v{vA[0][0]}, v{vT[0]}, 4, v{vT[2]}
    v_xor_b32 v{vT[0]}, 4, v{vT[0]}
    v_lshl_add_u32 v{vA[0][1]}, v{vT[0]}, 4, v{vT[2]}
    v_add_u32 v{vA[1][0]}, {3*STG}, v{vA[0][0]}
    v_add_u32 v{vA[1][1]}, {3*STG}, v{vA[0][1]}
    """)
    vWi = [[va.get() for i in range(3)] for h in range(2)]
    nv = va.n
    a.e(f"""
    v_bfe_u32 v{vT[0]}, v{vL}, 2, 2
    v_lshl_add_u32 v{vT[0]}, v{vG}, 3, v{vT[0]}
    v_mul_u32_u24 v{vT[0]}, 192, v{vT[0]}
    v_and_b32 v{vT[1]}, 3, v{vL}
    v_lshl_add_u32 v{vT[0]}, v{vT[1]}, 3, v{vT[0]}
    v_add_u32 v{vT[0]}, {WOFF}, v{vT[0]}
    v_and_b32 v{vT[1]}, 1, v{vG}
    s_mul_i32 s39, s30, 3
    """)
    for i in range(3):
        a.e(f"""
        s_add_u32 s40, s39, {i}
        v_xor_b32 v{vT[2]}, s40, v{vT[1]}
        v_lshl_add_u32 v{vWi[0][i]}, v{vT[2]}, 5, v{vT[0]}
        v_add_u32 v{vWi[1][i]}, {3*STG}, v{vWi[0][i]}
        """)
    a.e(f"""
    s_waitcnt lgkmcnt(0)
    s_mov_b32 s16, s4
    s_mov_b32 s17, s5
    s_mov_b32 s18, {S*D*2}
    s_mov_b32 s19, 0x00020000
    s_mov_b32 s20, s6
    s_mov_b32 s21, s7
    s_mov_b32 s22, {D*D*2}
    s_mov_b32 s23, 0x00020000
    s_mov_b32 s24, s14
    s_mov_b32 s25, s15
    s_mov_b32 s26, 0x10000000
    s_mov_b32 s27, 0x00020000
    s_mov_b32 s52, s8
    s_mov_b32 s53, s9
    s_mov_b32 s54, {FH*D*2}
    s_mov_b32 s55, 0x00020000
    s_mov_b32 s56, s10
    s_mov_b32 s57, s11
    s_mov_b32 s58, {S*D*2}
    s_mov_b32 s59, 0x00020000
    """)
    a.e(f"""
    s_lshl_b32 s39, s28, 4
    s_add_u32 s40, s33, s39
    s_mul_i32 s44, s40, 5760
    s_add_u32 s44, s44, {WS_OH}
    s_mul_i32 s46, s39, 1152
    s_lshl_b32 s40, s34, 1
    s_add_u32 s46, s46, s40
    s_lshl_b32 s47, s28, 11
    s_mul_i32 s49, s28, 3072
    s_add_u32 s49, s49, {WOFF}
    """)
    def dma(stage):
        sl = (stage % NSLOT) * STG
        k = stage * 128
        if stage < 9: srd, kw = "s[20:23]", stage*64*1152
        else: srd, kw = "s[52:55]", (stage-9)*64*1152
        a.e(f"""
        s_add_u32 m0, s47, {sl}
        s_add_u32 s50, s44, {k}
        buffer_load_dwordx4 v{vDA[0]}, s[24:27], s50 offen lds
        s_add_u32 m0, s47, {sl+1024}
        s_add_u32 s50, s44, {k+8*5760}
        buffer_load_dwordx4 v{vDA[1]}, s[24:27], s50 offen lds
        s_add_u32 s50, s46, {kw}
        """)
        for i in range(3):
            a.e(f"""
            s_add_u32 m0, s49, {sl+1024*i}
            s_nop 0
            buffer_load_dwordx4 v{vDW[i]}, {srd}, s50 offen lds
            """)
    def reads(stage):
        st = stage & 1
        sl = stage % NSLOT
        hb = sl // 3; off = (sl % 3) * STG
        for kk in range(2):
            for j in range(2):
                a.e(f"ds_read_b128 {vr(fa[st][kk][j],4)}, v{vA[hb][kk]} offset:{off + j*2048}")
            for i in range(3):
                for h in range(2):
                    a.e(f"ds_read_b64_tr_b16 {vr(fw[st][kk][i]+2*h,2)}, v{vWi[hb][i]} offset:{off + (32*kk+4*h)*192}")
    PF = NSLOT - 1
    for s_ in range(PF): dma(s_)
    a.e(f"s_waitcnt vmcnt({5*(PF-1)})\ns_barrier")
    reads(0)
    for i in range(NSTG):
        if i + 1 < NSTG:
            inflight_after = min(NSTG - 1, i + PF - 1) - (i + 1)
            a.e(f"s_waitcnt vmcnt({5*inflight_after}) lgkmcnt(0)\ns_barrier")
            reads(i+1)
            if i + PF < NSTG: dma(i+PF)
        else:
            a.e("s_waitcnt lgkmcnt(0)")
        st = i & 1
        for kk in range(2):
            for ii in range(3):
                for j in range(2):
                    c = "0" if (i == 0 and kk == 0) else vr(acc[ii][j], 4)
                    a.e(f"v_mfma_f32_16x16x32_bf16 {vr(acc[ii][j],4)}, {vr(fw[st][kk][ii],4)}, {vr(fa[st][kk][j],4)}, {c}")
    a.e(f"""
    s_lshl_b32 s39, s29, 5
    s_add_u32 s39, s39, s33
    v_add_u32 v{vT[0]}, s39, v{vL15}
    v_lshlrev_b32 v{vT[1]}, 3, v{vG}
    s_movk_i32 s40, 1152
    v_mad_u32_u24 v{vX}, v{vT[0]}, s40, v{vT[1]}
    v_add_u32 v{vT[2]}, {16*1152}, v{vX}
    s_mul_i32 s41, s30, 96
    s_lshl_b32 s42, s34, 1
    s_add_u32 s42, s42, s41
    """)
    for ii in range(3):
        for j in range(2):
            a.e(f"buffer_load_dwordx2 {vr(xr[ii][j],2)}, v{vX if j==0 else vT[2]}, s[16:19], s42 offen offset:{ii*32}")
    a.e("s_waitcnt vmcnt(0)\ns_nop 4")
    for ii in range(3):
        for j in range(2):
            ac = acc[ii][j]; z = xr[ii][j]
            a.e(f"""
            v_lshlrev_b32 v{vT[4]}, 16, v{z}
            v_and_b32 v{vT[5]}, 0xffff0000, v{z}
            v_lshlrev_b32 v{vT[6]}, 16, v{z+1}
            v_and_b32 v{vT[7]}, 0xffff0000, v{z+1}
            """)
            for r in range(4): a.e(f"v_add_f32 v{ac+r}, v{ac+r}, v{vT[4+r]}")
            a.e(f"""
            v_cvt_pk_bf16_f32 v{ac}, v{ac}, v{ac+1}
            v_cvt_pk_bf16_f32 v{ac+1}, v{ac+2}, v{ac+3}
            buffer_store_dwordx2 {vr(ac,2)}, v{vX if j==0 else vT[2]}, s[56:59], s42 offen offset:{ii*32}
            """)
    a.label(END)
    a.e("s_endpgm")
    a.end_kernel(name, nv)
    print("k4 vgprs", nv)
    for p in range(192): assert (p*5462)>>16 == p//12
```

```python
S=2048; D=576; H=32; DH=18; F=4608; FH=2304
WS_Q    = 0
WS_KV   = 0x00300000
WS_STAT = 0x00340000
WS_Z1   = 0x00400000
WS_Z2T  = 0x00E00000
WS_Z2N  = 0x01800000
WS_OH   = 0x02200000
WS_END  = 0x02E00000
```

```python
import sys
from asmlib import *
from k1 import gen_k1
a = Asm()
gen_k1(a)
nk = int(sys.argv[1]) if len(sys.argv) > 1 else 4
if nk >= 2:
    from k2 import gen_k2
    gen_k2(a)
if nk >= 3:
    from k3 import gen_k3
    gen_k3(a)
if nk >= 4:
    from k4 import gen_k4
    gen_k4(a)
hdr = open("parallel_sum__grouped_kv_mqa__mixer_gmlp__prompt.s.ref").read().split("\n")
hdr = "\n".join(l for l in hdr[:14]) + "\n"
open("parallel_sum__grouped_kv_mqa__mixer_gmlp__prompt.s", "w").write(a.text(hdr))
```

```python
from asmlib import *
from layout import *
from k1 import ln_scalars
import math, os

def gen_k2(a):
    name = "k2_kernel"
    KVB = 2304
    LDS_ST = 64*KVB
    a.begin_kernel(name, 256, 512, LDS_ST + 1024)
    va = VAlloc(1)
    vL = va.get(); vL31 = va.get(); vHH = va.get()
    vT0 = va.get(8, 4); vT = [vT0+i for i in range(8)]
    vKa = va.get(); vK2a = va.get(); vVa = va.get()
    vMx = va.get(); vAl = va.get(); vZo = va.get(); vSo = va.get(); vKV = va.get()
    qf0 = va.get(4, 4); qf1 = va.get(4, 4)
    Sb = [[va.get(16, 4) for b in range(2)] for p in range(2)]
    P = va.get(16, 4)
    O = va.get(16, 4)
    Cn = va.get(16, 4)
    kf0 = [va.get(4, 4) for b in range(2)]
    kf1 = [va.get(4, 4) for b in range(2)]
    vf = [[va.get(4, 4) for m in range(2)] for b in range(2)]
    zr = va.get(20, 4)
    sreg = va.get(32, 4)
    nrm = sreg + 16
    vst = va.get(2)
    stp = Stamps(a, bool(os.environ.get('STAMPS2')), 24, vst, wg=int(os.environ.get('STWG','0')))
    nv = va.n
    END = "k2_end"
    a.e(f"""
    s_cmp_ge_u32 s2, 256
    s_cbranch_scc1 {END}
    s_load_dwordx2 s[14:15], s[0:1], 96
    s_load_dwordx2 s[4:5], s[0:1], 32
    s_load_dwordx2 s[6:7], s[0:1], 56
    s_load_dwordx2 s[8:9], s[0:1], 72
    v_lshrrev_b32 v{vT[0]}, 6, v0
    v_and_b32 v{vL}, 63, v0
    s_nop 0
    v_readfirstlane_b32 s28, v{vT[0]}
    v_and_b32 v{vL31}, 31, v{vL}
    v_lshrrev_b32 v{vHH}, 5, v{vL}
    s_mov_b32 s45, 0xffff0000
    s_waitcnt lgkmcnt(0)
    s_mov_b32 s24, s14
    s_mov_b32 s25, s15
    s_mov_b32 s26, 0x10000000
    s_mov_b32 s27, 0x00020000
    """)
    stp.init(28, WS_END)
    stp.stamp()
    a.e(f"""
    s_and_b32 s30, s2, 3
    s_lshl_b32 s30, s30, 3
    s_add_u32 s30, s30, s28
    s_lshr_b32 s31, s2, 2
    s_lshl_b32 s31, s31, 5
    s_mul_i32 s39, s31, 1152
    s_mul_i32 s40, s30, 36
    s_add_u32 s39, s39, s40
    s_add_u32 s39, s39, {WS_Q}
    s_movk_i32 s40, 1152
    v_lshlrev_b32 v{vT[1]}, 4, v{vHH}
    v_mad_u32_u24 v{vT[1]}, v{vL31}, s40, v{vT[1]}
    v_mul_u32_u24 v{vT[2]}, s40, v{vL31}
    buffer_load_dwordx4 {vr(qf0,4)}, v{vT[1]}, s[24:27], s39 offen
    buffer_load_dword v{qf1}, v{vT[2]}, s[24:27], s39 offen offset:32
    """)
    a.e(f"""
    v_lshlrev_b32 v{vKV}, 4, v{vL}
    s_lshl_b32 s43, s28, 10
    s_add_u32 s42, s43, {WS_KV}
    """)
    kvdma = f"""
        s_mov_b32 m0, s43
        s_add_u32 s43, s43, 8192
        buffer_load_dwordx4 v{vKV}, s[24:27], s42 offen lds
        s_add_u32 s42, s42, 8192
        """
    for i in range(5): a.e(kvdma)
    hooks = [kvdma]*13
    a.e(f"""
    s_lshr_b32 s32, s2, 4
    s_and_b32 s33, s2, 15
    v_and_b32 v{vT[3]}, 15, v0
    v_lshrrev_b32 v{vT[4]}, 4, v0
    v_lshlrev_b32 v{vT[4]}, 12, v{vT[4]}
    v_lshl_add_u32 v{vZo}, v{vT[3]}, 4, v{vT[4]}
    v_lshlrev_b32 v{vSo}, 3, v0
    s_mul_i32 s39, s32, {144*4096}
    s_lshl_b32 s40, s33, 8
    s_add_u32 s39, s39, s40
    s_add_u32 s34, s39, {WS_Z2N}
    s_add_u32 s36, s39, {WS_Z2T}
    s_cmp_ge_u32 s28, 4
    s_cselect_b32 s37, {4*32*4096}, 0
    """)
    for p in range(4):
        hooks.append(f"buffer_load_dwordx4 {vr(zr+4*p,4)}, v{vZo}, s[24:27], s36 offen\ns_add_u32 s36, s36, {32*4096}")
    hooks.append(f"s_sub_u32 s36, s36, s37\nbuffer_load_dwordx4 {vr(zr+16,4)}, v{vZo}, s[24:27], s36 offen")
    def stat_loads():
        a.e(f"""
        s_cmp_ge_u32 s28, 2
        s_cbranch_scc1 k2_nostat0
        s_lshl_b32 s39, s33, 10
        s_add_u32 s39, s39, {WS_STAT}
        """)
        for p in range(16):
            a.e(f"buffer_load_dwordx2 {vr(sreg+2*p,2)}, v{vSo}, s[24:27], s39 offen\ns_add_u32 s39, s39, 16384")
        a.label("k2_nostat0")
    a.e(f"""
    v_mov_b32 v{qf1+1}, 0
    v_mov_b32 v{qf1+2}, 0
    v_mov_b32 v{qf1+3}, 0
    v_lshlrev_b32 v{vKa}, 4, v{vHH}
    v_lshl_add_u32 v{vKa}, v{vL31}, 5, v{vKa}
    v_lshlrev_b32 v{vK2a}, 2, v{vL31}
    s_movk_i32 s39, 288
    v_mul_u32_u24 v{vVa}, s39, v{vHH}
    v_lshl_add_u32 v{vVa}, v{vL31}, 4, v{vVa}
    s_mov_b32 s46, -1
    s_mov_b32 s47, 0
    s_mov_b32 s48, 0x3ffff
    s_mov_b32 s49, 0x3ffff
    s_mov_b32 s50, 0xff800000
    s_mov_b32 s51, 0xff800000
    v_cmp_eq_u32 vcc, 18, v{vL31}
    v_mov_b32 v{vT[0]}, 0x3f803f80
    """)
    for b in range(2):
        for i in range(4): a.e(f"v_mov_b32 v{kf1[b]+i}, 0")
        for m in range(2):
            for i in range(4): a.e(f"v_cndmask_b32 v{vf[b][m]+i}, 0, v{vT[0]}, vcc")
    for i in range(16): a.e(f"v_mov_b32 v{O+i}, 0\nv_mov_b32 v{Cn+i}, 0\nv_mov_b32 v{P+i}, 0")
    def kv_wait(rounds):
        n = 18 - rounds + 5 + (2 if stp.en else 0)
        a.e(f"s_waitcnt vmcnt({n})\ns_barrier")
    def k_reads(off):
        for b in range(2):
            a.e(f"ds_read_b128 {vr(kf0[b],4)}, v{vKa} offset:{off + b*KVB}")
        a.e("s_mov_b64 exec, s[46:47]")
        for b in range(2):
            a.e(f"ds_read_b32 v{kf1[b]}, v{vK2a} offset:{off + b*KVB + 1024}")
        a.e("s_mov_b64 exec, -1")
    def v_reads(off):
        a.e("s_mov_b64 exec, s[48:49]")
        for b in range(2):
            for m in range(2):
                a.e(f"ds_read_b128 {vr(vf[b][m],4)}, v{vVa} offset:{off + b*KVB + 1152 + m*576}")
        a.e("s_mov_b64 exec, -1")
    def qk(par):
        for b in range(2):
            a.e(f"v_mfma_f32_32x32x16_bf16 {vr(Sb[par][b],16)}, {vr(kf0[b],4)}, {vr(qf0,4)}, {vr(Cn,16)}")
        for b in range(2):
            a.e(f"v_mfma_f32_32x32x16_bf16 {vr(Sb[par][b],16)}, {vr(kf1[b],4)}, {vr(qf1,4)}, {vr(Sb[par][b],16)}")
    rare = []
    def k_read_list(off):
        L = []
        for b in range(2):
            L.append(f"ds_read_b128 {vr(kf0[b],4)}, v{vKa} offset:{off + b*KVB}")
        L.append("s_mov_b64 exec, s[46:47]")
        for b in range(2):
            L.append(f"ds_read_b32 v{kf1[b]}, v{vK2a} offset:{off + b*KVB + 1024}")
        L.append("s_mov_b64 exec, -1")
        return "\n".join(L)
    def v_read_blk(b):
        L = ["s_mov_b64 exec, s[48:49]"]
        for m in range(2):
            L.append(f"ds_read_b128 {vr(vf[b][m],4)}, v{vVa} offset:{b*KVB + 1152 + m*576}")
        L.append("s_mov_b64 exec, -1")
        return "\n".join(L)
    def pv(b, m):
        return f"v_mfma_f32_32x32x16_bf16 {vr(O,16)}, {vr(vf[b][m],4)}, {vr(P+8*b+4*m,4)}, {vr(O,16)}"
    def qk1(par, b, half):
        if half == 0:
            return f"v_mfma_f32_32x32x16_bf16 {vr(Sb[par][b],16)}, {vr(kf0[b],4)}, {vr(qf0,4)}, {vr(Cn,16)}"
        return f"v_mfma_f32_32x32x16_bf16 {vr(Sb[par][b],16)}, {vr(kf1[b],4)}, {vr(qf1,4)}, {vr(Sb[par][b],16)}"
    def iteration(par, hooks=None):
        hooks = list(hooks or [])
        a.dropping = True
        def hook():
            if hooks: a.e(hooks.pop(0))
        sv = [Sb[par][b]+r for b in range(2) for r in range(16)]
        mx = [f"v_max3_f32 v{vMx}, v{sv[0]}, v{sv[1]}, v{sv[2]}", f"v_max3_f32 v{vT[0]}, v{sv[3]}, v{sv[4]}, v{sv[5]}"]
        i = 6; tog = 0
        while i + 1 < 32:
            d = vMx if tog == 0 else vT[0]
            mx.append(f"v_max3_f32 v{d}, v{d}, v{sv[i]}, v{sv[i+1]}")
            i += 2; tog ^= 1
        a.e("s_waitcnt lgkmcnt(4)")
        a.e(pv(1, 0))
        a.e(v_read_blk(0))
        for x in mx[:7]: a.e(x)
        a.e(pv(1, 1))
        hook()
        for x in mx[7:]: a.e(x)
        Lr = a.newlabel("k2rare"); Lb = a.newlabel("k2back")
        a.e(f"""
        v_max_f32 v{vMx}, v{vMx}, v{vT[0]}
        v_cmp_lt_f32 vcc, s50, v{vMx}
        s_waitcnt lgkmcnt(2)
        s_cbranch_vccnz {Lr}
        {Lb}:
        """)
        rare.append((Lr, Lb, sv))
        a.e(qk1(par^1, 0, 0))
        a.e(v_read_blk(1))
        for x in sv[0:6]: a.e(f"v_exp_f32 v{x}, v{x}")
        a.e(qk1(par^1, 1, 0))
        hook()
        for x in sv[6:12]: a.e(f"v_exp_f32 v{x}, v{x}")
        a.e(qk1(par^1, 0, 1))
        for x in sv[12:16]: a.e(f"v_exp_f32 v{x}, v{x}")
        hook()
        for x in sv[16:18]: a.e(f"v_exp_f32 v{x}, v{x}")
        a.e(qk1(par^1, 1, 1))
        for i in range(8): a.e(f"v_cvt_pk_bf16_f32 v{P+i}, v{sv[2*i]}, v{sv[2*i+1]}")
        a.e(f"""
        v_add_u32 v{vKa}, {2*KVB}, v{vKa}
        v_add_u32 v{vK2a}, {2*KVB}, v{vK2a}
        s_waitcnt lgkmcnt(2)
        """)
        a.e(pv(0, 0))
        for x in sv[18:24]: a.e(f"v_exp_f32 v{x}, v{x}")
        a.e(k_read_list(2*KVB))
        hook()
        a.e(pv(0, 1))
        for x in sv[24:32]: a.e(f"v_exp_f32 v{x}, v{x}")
        a.e(f"v_add_u32 v{vVa}, {2*KVB}, v{vVa}")
        hook()
        for i in range(8, 16): a.e(f"v_cvt_pk_bf16_f32 v{P+i}, v{sv[2*i]}, v{sv[2*i+1]}")
        while hooks: hook()
        a.dropping = False
    def loop(ntrips):
        L = a.newlabel("k2loop")
        a.e(f"s_mov_b32 s35, {ntrips}")
        a.label(L)
        iteration(0); iteration(1)
        a.e(f"""
        s_sub_u32 s35, s35, 1
        s_cmp_lg_u32 s35, 0
        s_cbranch_scc1 {L}
        """)
    need = lambda k: min(18, -(-((4*k+8)*KVB)//8192))
    segs = [2, 3, 4, 7]
    k0 = 0
    a.e(f"s_waitcnt vmcnt({1 + (2 if stp.en else 0)})\ns_barrier")
    a.e(f"v_cmp_gt_u32 vcc, 32, v{vL}\ns_nop 1\nv_cndmask_b32 v{qf1}, 0, v{qf1}, vcc")
    stp.stamp()
    k_reads(0)
    a.e("s_waitcnt lgkmcnt(0)\ns_nop 0")
    qk(0)
    a.e(v_read_blk(1))
    k_reads(2*KVB)
    a.e("s_nop 7\ns_nop 7")
    for si, n in enumerate(segs):
        if si > 0:
            kv_wait(need(k0 + n - 1))
            stp.stamp()
            if si == 1: stat_loads()
            loop(n)
        else:
            for it in range(4):
                iteration(it & 1, hooks[5*it:5*it+5])
        k0 += n
        if si == 2:
            a.e(f"""
            s_waitcnt vmcnt(0)
            s_cmp_ge_u32 s28, 2
            s_cbranch_scc1 k2_nostat
            """)
            for p in range(1, 16):
                a.e(f"v_add_f32 v{sreg}, v{sreg}, v{sreg+2*p}\nv_add_f32 v{sreg+1}, v{sreg+1}, v{sreg+2*p+1}")
            ln_scalars(a, sreg, sreg+1, FH, sreg+2, sreg+3, vT[4], vT[5], vT[6])
            a.e(f"""
            v_add_u32 v{vT[3]}, {LDS_ST}, v{vSo}
            ds_write_b64 v{vT[3]}, {vr(sreg+2,2)}
            """)
            a.label("k2_nostat")
            a.e(f"""
            s_waitcnt lgkmcnt(0)
            s_barrier
            v_and_b32 v{vT[3]}, 15, v0
            v_lshlrev_b32 v{vT[5]}, 6, v{vT[3]}
            v_add_u32 v{vT[5]}, {LDS_ST}, v{vT[5]}
            """)
            for i in range(4):
                a.e(f"ds_read_b128 {vr(nrm+4*i,4)}, v{vT[5]} offset:{16*i}")
            a.e("s_waitcnt lgkmcnt(0)")
            def norm_chunk(p):
                for i in range(4):
                    w = zr + 4*p + i
                    a.e(f"""
                    v_lshlrev_b32 v{vT[0]}, 16, v{w}
                    v_and_b32 v{vT[1]}, s45, v{w}
                    v_fma_f32 v{vT[0]}, v{vT[0]}, v{nrm+4*i}, v{nrm+4*i+1}
                    v_fma_f32 v{vT[1]}, v{vT[1]}, v{nrm+4*i+2}, v{nrm+4*i+3}
                    v_cvt_pk_bf16_f32 v{w}, v{vT[0]}, v{vT[1]}
                    """)
                a.e(f"buffer_store_dwordx4 {vr(zr+4*p,4)}, v{vZo}, s[24:27], s34 offen\ns_add_u32 s34, s34, {32*4096}")
            for p in range(4): norm_chunk(p)
            a.e("s_cmp_ge_u32 s28, 4\ns_cbranch_scc1 k2_n5")
            norm_chunk(4)
            a.label("k2_n5")
            a.e(f"""
            s_mov_b32 s52, s6
            s_mov_b32 s53, s7
            s_mov_b32 s54, {S*S*2}
            s_mov_b32 s55, 0x00020000
            s_mov_b32 s56, s4
            s_mov_b32 s57, s5
            s_mov_b32 s58, {D*D*2}
            s_mov_b32 s59, 0x00020000
            s_mov_b32 s60, s8
            s_mov_b32 s61, s9
            s_mov_b32 s62, {FH*D*2}
            s_mov_b32 s63, 0x00020000
            s_lshl_b32 s39, s2, 8
            v_and_b32 v{vT[2]}, 255, v0
            v_add_u32 v{vT[2]}, s39, v{vT[2]}
            v_lshlrev_b32 v{vT[2]}, 7, v{vT[2]}
            s_cmp_ge_u32 s28, 4
            s_cbranch_scc1 k2_pf2
            buffer_load_dword v{sreg}, v{vT[2]}, s[52:55], 0 offen
            s_branch k2_pf3
            k2_pf2:
            buffer_load_dword v{sreg}, v{vT[2]}, s[56:59], 0 offen
            buffer_load_dword v{sreg+1}, v{vT[2]}, s[60:63], 0 offen
            k2_pf3:
            """)
    stp.stamp()
    a.e("s_waitcnt lgkmcnt(0)\ns_nop 0")
    a.e(pv(1, 0)); a.e(pv(1, 1))
    a.e("s_nop 7\ns_nop 7")
    a.e(f"""
    v_mov_b32 v{vT[0]}, v{O+10}
    v_mov_b32 v{vT[1]}, v{O+10}
    s_nop 1
    v_permlane32_swap_b32 v{vT[1]}, v{vT[0]}
    v_cmp_gt_u32 vcc, 32, v{vL}
    s_nop 1
    v_cndmask_b32 v{vT[0]}, v{vT[1]}, v{O+10}, vcc
    v_rcp_f32 v{vT[0]}, v{vT[0]}
    s_nop 0
    """)
    for r in range(10): a.e(f"v_mul_f32 v{O+r}, v{O+r}, v{vT[0]}")
    for i in range(5): a.e(f"v_cvt_pk_bf16_f32 v{P+i}, v{O+2*i}, v{O+2*i+1}")
    a.e(f"""
    s_movk_i32 s40, 5760
    v_lshlrev_b32 v{vT[1]}, 3, v{vHH}
    v_mad_u32_u24 v{vT[1]}, v{vL31}, s40, v{vT[1]}
    s_mul_i32 s39, s31, 5760
    s_mul_i32 s40, s30, 36
    s_add_u32 s39, s39, s40
    s_add_u32 s39, s39, {WS_OH}
    buffer_store_dwordx2 {vr(P,2)}, v{vT[1]}, s[24:27], s39 offen
    buffer_store_dwordx2 {vr(P+2,2)}, v{vT[1]}, s[24:27], s39 offen offset:16
    s_mov_b64 exec, s[46:47]
    buffer_store_dword v{P+4}, v{vT[1]}, s[24:27], s39 offen offset:32
    """)
    a.label(END)
    a.e("s_endpgm")
    for (Lr, Lb, sv) in rare:
        a.label(Lr)
        a.e(f"""
        v_mov_b32 v{vT[1]}, v{vMx}
        s_nop 1
        v_permlane32_swap_b32 v{vT[1]}, v{vMx}
        s_nop 1
        v_max_f32 v{vMx}, v{vMx}, v{vT[1]}
        v_max_f32 v{vMx}, s51, v{vMx}
        v_max_f32 v{vAl}, 0, v{vMx}
        v_exp_f32 v{vAl}, -v{vAl}
        s_mov_b32 s50, 0x42700000
        s_mov_b32 s51, 0
        """)
        for x in sv: a.e(f"v_sub_f32 v{x}, v{x}, v{vMx}")
        for r in range(16): a.e(f"v_sub_f32 v{Cn+r}, v{Cn+r}, v{vMx}")
        for r in range(12): a.e(f"v_mul_f32 v{O+r}, v{O+r}, v{vAl}")
        a.e(f"s_nop 1\ns_branch {Lb}")
    a.end_kernel(name, nv)
    print("k2 vgprs", nv)
```

```python
from asmlib import *
from layout import *
import os

def gen_k3(a):
    name = "k3_kernel"
    STG = 34816; BOFF = 18432
    NSTG = 32
    a.begin_kernel(name, 256, 512, 4*STG)
    va = VAlloc(1)
    vL = va.get(); vL15 = va.get(); vG = va.get()
    vT0 = va.get(8, 4); vT = [vT0+i for i in range(8)]
    vD = [va.get(), va.get(), va.get()]
    vA = [va.get(), va.get()]; vB = [va.get(), va.get()]
    vZ = [va.get(), va.get()]; vH = [va.get(), va.get()]; vBs = [va.get(), va.get()]
    acc = [[va.get(4, 4) for j in range(2)] for i in range(9)]
    fa = [[va.get(4, 4) for i in range(9)] for s in range(2)]
    fb = [[va.get(4, 4) for j in range(2)] for s in range(2)]
    z1r = [[va.get(2, 2) for j in range(2)] for i in range(5)]
    vst = va.get(2)
    stp = Stamps(a, bool(os.environ.get('STAMPS3')), 24, vst, wg=int(os.environ.get('STWG','0')))
    nv = va.n
    END = "k3_end"
    a.e(f"""
    s_cmp_ge_u32 s2, 256
    s_cbranch_scc1 {END}
    s_load_dwordx4 s[4:7], s[0:1], 56
    s_load_dwordx2 s[14:15], s[0:1], 96
    v_lshrrev_b32 v{vT[0]}, 6, v0
    v_and_b32 v{vL}, 63, v0
    s_nop 0
    v_readfirstlane_b32 s28, v{vT[0]}
    v_and_b32 v{vL15}, 15, v{vL}
    v_lshrrev_b32 v{vG}, 4, v{vL}
    s_and_b32 s29, s28, 3
    s_lshr_b32 s30, s28, 2
    s_and_b32 s39, s2, 7
    s_lshr_b32 s40, s2, 3
    s_and_b32 s41, s39, 3
    s_lshl_b32 s41, s41, 2
    s_and_b32 s42, s40, 3
    s_add_u32 s31, s41, s42
    s_lshr_b32 s41, s39, 2
    s_lshl_b32 s41, s41, 3
    s_lshr_b32 s42, s40, 2
    s_add_u32 s32, s41, s42
    s_mul_i32 s33, s31, 144
    s_lshl_b32 s34, s32, 7
    """)
    a.e(f"""
    v_lshrrev_b32 v{vT[0]}, 3, v{vL}
    v_and_b32 v{vT[1]}, 7, v{vL}
    v_lshrrev_b32 v{vT[2]}, 1, v{vT[0]}
    v_xor_b32 v{vT[1]}, v{vT[1]}, v{vT[2]}
    v_lshlrev_b32 v{vT[0]}, 12, v{vT[0]}
    v_lshl_add_u32 v{vD[0]}, v{vT[1]}, 4, v{vT[0]}
    v_xor_b32 v{vD[1]}, 64, v{vD[0]}
    s_and_b32 s39, s28, 1
    s_lshl_b32 s39, s39, 6
    v_xor_b32 v{vD[2]}, s39, v{vD[0]}
    """)
    a.e(f"""
    s_lshl_b32 s39, s30, 2
    v_add_u32 v{vT[0]}, s39, v{vG}
    v_bfe_u32 v{vT[1]}, v{vL15}, 1, 3
    v_xor_b32 v{vT[0]}, v{vT[0]}, v{vT[1]}
    v_lshlrev_b32 v{vT[0]}, 4, v{vT[0]}
    v_lshl_add_u32 v{vA[0]}, v{vL15}, 7, v{vT[0]}
    v_add_u32 v{vA[1]}, {2*STG}, v{vA[0]}
    s_lshl_b32 s39, s29, 12
    s_add_u32 s39, s39, {BOFF}
    v_add_u32 v{vB[0]}, s39, v{vA[0]}
    v_add_u32 v{vB[1]}, {2*STG}, v{vB[0]}
    s_waitcnt lgkmcnt(0)
    s_mov_b32 s16, s4
    s_mov_b32 s17, s5
    s_mov_b32 s18, {S*S*2}
    s_mov_b32 s19, 0x00020000
    s_mov_b32 s20, s6
    s_mov_b32 s21, s7
    s_mov_b32 s22, {S*2}
    s_mov_b32 s23, 0x00020000
    s_mov_b32 s24, s14
    s_mov_b32 s25, s15
    s_mov_b32 s26, 0x10000000
    s_mov_b32 s27, 0x00020000
    """)
    a.e(f"""
    s_lshl_b32 s39, s28, 4
    s_add_u32 s40, s33, s39
    s_lshl_b32 s44, s40, 12
    s_add_u32 s44, s44, {WS_Z2N}
    s_lshl_b32 s41, s28, 3
    s_add_u32 s41, s41, 128
    s_add_u32 s41, s41, s33
    s_lshl_b32 s45, s41, 12
    s_add_u32 s45, s45, {WS_Z2N}
    s_add_u32 s40, s34, s39
    s_lshl_b32 s46, s40, 12
    s_lshl_b32 s47, s28, 11
    s_lshl_b32 s48, s28, 10
    s_add_u32 s48, s48, {16*1024}
    s_add_u32 s49, s47, {BOFF}
    """)
    def dma(stage):
        sl = (stage & 3) * STG
        k = stage * 128
        L = a.newlabel("k3d")
        a.e(f"""
        s_add_u32 m0, s47, {sl}
        s_add_u32 s50, s44, {k}
        buffer_load_dwordx4 v{vD[0]}, s[24:27], s50 offen lds
        s_add_u32 m0, s47, {sl+1024}
        s_add_u32 s50, s44, {k+8*4096}
        buffer_load_dwordx4 v{vD[1]}, s[24:27], s50 offen lds
        s_add_u32 m0, s49, {sl}
        s_add_u32 s50, s46, {k}
        buffer_load_dwordx4 v{vD[0]}, s[16:19], s50 offen lds
        s_add_u32 m0, s49, {sl+1024}
        s_add_u32 s50, s46, {k+8*4096}
        buffer_load_dwordx4 v{vD[1]}, s[16:19], s50 offen lds
        s_cmp_ge_u32 s28, 2
        s_cbranch_scc1 {L}
        s_add_u32 m0, s48, {sl}
        s_add_u32 s50, s45, {k}
        buffer_load_dwordx4 v{vD[2]}, s[24:27], s50 offen lds
        {L}:
        """)
    def reads(stage):
        st = stage & 1
        sl = stage & 3
        base = sl >> 1; off = (sl & 1) * STG
        for j in range(2):
            a.e(f"ds_read_b128 {vr(fb[st][j],4)}, v{vB[base]} offset:{off + j*2048}")
        for i in range(9):
            a.e(f"ds_read_b128 {vr(fa[st][i],4)}, v{vA[base]} offset:{off + i*2048}")
    stp.init(28, WS_END)
    stp.stamp()
    for s_ in range(3): dma(s_)
    a.e("s_waitcnt vmcnt(8)\ns_barrier")
    stp.stamp()
    reads(0)
    for i in range(NSTG):
        if i + 1 < NSTG:
            rem = 4 if i + 2 < NSTG else 0
            a.e(f"s_waitcnt vmcnt({rem})\ns_barrier")
            reads(i+1)
            if i + 3 < NSTG: dma(i+3)
            a.e("s_waitcnt lgkmcnt(11)")
        else:
            a.e("s_waitcnt lgkmcnt(0)")
        if i % 4 == 0: stp.stamp()
        st = i & 1
        for ii in range(9):
            for j in range(2):
                c = "0" if i == 0 else vr(acc[ii][j], 4)
                a.e(f"v_mfma_f32_16x16x32_bf16 {vr(acc[ii][j],4)}, {vr(fa[st][ii],4)}, {vr(fb[st][j],4)}, {c}")
    stp.stamp()
    a.e(f"""
    s_lshl_b32 s39, s29, 5
    s_add_u32 s39, s39, s34
    v_add_u32 v{vT[0]}, s39, v{vL15}
    v_lshlrev_b32 v{vT[1]}, 3, v{vG}
    s_movk_i32 s40, 4608
    v_mad_u32_u24 v{vZ[0]}, v{vT[0]}, s40, v{vT[1]}
    v_add_u32 v{vZ[1]}, {16*4608}, v{vZ[0]}
    s_movk_i32 s40, 5760
    v_mad_u32_u24 v{vH[0]}, v{vT[0]}, s40, v{vT[1]}
    v_add_u32 v{vH[1]}, {16*5760}, v{vH[0]}
    v_lshlrev_b32 v{vT[0]}, 1, v{vT[0]}
    buffer_load_ushort v{vBs[0]}, v{vT[0]}, s[20:23], 0 offen
    buffer_load_ushort v{vBs[1]}, v{vT[0]}, s[20:23], 0 offen offset:32
    s_mul_i32 s41, s30, 160
    s_lshl_b32 s42, s33, 1
    s_add_u32 s42, s42, s41
    s_add_u32 s43, s42, {WS_OH + 1152}
    s_add_u32 s42, s42, {WS_Z1}
    """)
    for ii in range(5):
        for j in range(2):
            if ii == 4:
                if j == 0: a.e("s_cmp_eq_u32 s30, 1\ns_cbranch_scc1 k3_z4")
            a.e(f"buffer_load_dwordx2 {vr(z1r[ii][j],2)}, v{vZ[j]}, s[24:27], s42 offen offset:{ii*32}")
    a.label("k3_z4")
    a.e(f"""
    s_barrier
    v_lshlrev_b32 v{vT[0]}, 4, v{vL}
    s_mul_i32 s39, s28, 10240
    v_add_u32 v{vT[1]}, s39, v{vT[0]}
    s_xor_b32 s40, s28, 4
    s_mul_i32 s40, s40, 10240
    v_add_u32 v{vT[2]}, s40, v{vT[0]}
    s_nop 4
    s_cmp_eq_u32 s30, 1
    s_cbranch_scc1 k3_w1
    """)
    for i in range(5, 9):
        for j in range(2):
            a.e(f"ds_write_b128 v{vT[1]}, {vr(acc[i][j],4)} offset:{((i-5)*2+j)*1024}")
    a.e("s_waitcnt lgkmcnt(0)\ns_barrier")
    for i in range(5):
        for j in range(2):
            a.e(f"ds_read_b128 {vr(fa[0][i] if j==0 else fa[1][i],4)}, v{vT[2]} offset:{(i*2+j)*1024}")
    def fin(tiles):
        a.e("s_waitcnt vmcnt(0) lgkmcnt(0)")
        for j in range(2):
            a.e(f"v_lshlrev_b32 v{vBs[j]}, 16, v{vBs[j]}")
        for ii, i in enumerate(tiles):
            for j in range(2):
                o = fa[j][ii]
                ac = acc[i][j]
                z = z1r[ii][j]
                for r in range(4):
                    a.e(f"v_add_f32 v{ac+r}, v{ac+r}, v{o+r}")
                for r in range(4):
                    a.e(f"v_add_f32 v{ac+r}, v{ac+r}, v{vBs[j]}")
                a.e(f"""
                v_lshlrev_b32 v{vT[4]}, 16, v{z}
                v_and_b32 v{vT[5]}, 0xffff0000, v{z}
                v_lshlrev_b32 v{vT[6]}, 16, v{z+1}
                v_and_b32 v{vT[7]}, 0xffff0000, v{z+1}
                """)
                for r in range(4):
                    a.e(f"v_mul_f32 v{ac+r}, v{ac+r}, v{vT[4+r]}")
                a.e(f"""
                v_cvt_pk_bf16_f32 v{ac}, v{ac}, v{ac+1}
                v_cvt_pk_bf16_f32 v{ac+1}, v{ac+2}, v{ac+3}
                buffer_store_dwordx2 {vr(ac,2)}, v{vH[j]}, s[24:27], s43 offen offset:{ii*32}
                """)
    fin(range(5))
    a.e(f"s_branch {END}")
    a.label("k3_w1")
    for i in range(5):
        for j in range(2):
            a.e(f"ds_write_b128 v{vT[1]}, {vr(acc[i][j],4)} offset:{(i*2+j)*1024}")
    a.e("s_waitcnt lgkmcnt(0)\ns_barrier")
    for i in range(4):
        for j in range(2):
            a.e(f"ds_read_b128 {vr(fa[j][i],4)}, v{vT[2]} offset:{(i*2+j)*1024}")
    fin(range(5, 9))
    stp.stamp()
    a.label(END)
    a.e("s_endpgm")
    a.end_kernel(name, nv)
    print("k3 vgprs", nv)
```

```python
from asmlib import *
from layout import *
import math, os

def gen_kf(a):
    name = "kf_kernel"
    STG = 34816; BOFF = 18432; NSTG = 32
    KVB = 2304; KVP = 4608
    KVL = 4*STG
    a.begin_kernel(name, 256, 768, KVL + 4*KVP)
    END = "kf_end"
    a.e(f"""
    s_cmp_ge_u32 s2, 256
    s_cbranch_scc1 {END}
    s_load_dwordx4 s[4:7], s[0:1], 56
    s_load_dwordx2 s[14:15], s[0:1], 96
    s_load_dwordx2 s[8:9], s[0:1], 32
    s_load_dwordx2 s[10:11], s[0:1], 72
    v_lshrrev_b32 v1, 6, v0
    s_nop 0
    v_readfirstlane_b32 s28, v1
    s_waitcnt lgkmcnt(0)
    s_mov_b32 s24, s14
    s_mov_b32 s25, s15
    s_mov_b32 s26, 0x10000000
    s_mov_b32 s27, 0x00020000
    s_cmp_ge_u32 s28, 8
    s_cbranch_scc1 kf_gemm
    """)
    va = VAlloc(1)
    vL = va.get(); vL31 = va.get(); vHH = va.get()
    vT0 = va.get(4, 4); vT = [vT0+i for i in range(4)]
    vKa = va.get(); vK2a = va.get(); vVa = va.get(); vMx = va.get(); vAl = va.get(); vKV = va.get()
    qf0 = va.get(4, 4); qf1 = va.get(4, 4)
    Sb = [[va.get(16, 4) for b in range(2)] for g in range(2)]
    P = va.get(16, 4)
    O = va.get(16, 4)
    Cn = va.get(16, 4)
    kf0 = [va.get(4, 4) for b in range(2)]
    kf1 = [va.get(4, 4) for b in range(2)]
    vf = [[va.get(4, 4) for m in range(2)] for b in range(2)]
    stp = Stamps(a, bool(os.environ.get('STAMPSF')), 24, vT[2], wg=int(os.environ.get('STWG','0')))
    nvA = va.n
    a.e(f"""
    v_and_b32 v{vL}, 63, v0
    v_and_b32 v{vL31}, 31, v{vL}
    v_lshrrev_b32 v{vHH}, 5, v{vL}
    s_and_b32 s30, s2, 3
    s_lshl_b32 s30, s30, 3
    s_add_u32 s30, s30, s28
    s_lshr_b32 s31, s2, 2
    s_lshl_b32 s31, s31, 5
    s_mul_i32 s39, s31, 1152
    s_mul_i32 s40, s30, 36
    s_add_u32 s39, s39, s40
    s_add_u32 s39, s39, {WS_Q}
    s_movk_i32 s40, 1152
    v_lshlrev_b32 v{vT[1]}, 4, v{vHH}
    v_mad_u32_u24 v{vT[1]}, v{vL31}, s40, v{vT[1]}
    v_mul_u32_u24 v{vT[0]}, s40, v{vL31}
    s_mov_b32 s46, -1
    s_mov_b32 s47, 0
    s_mov_b32 s48, 0x3ffff
    s_mov_b32 s49, 0x3ffff
    buffer_load_dwordx4 {vr(qf0,4)}, v{vT[1]}, s[24:27], s39 offen
    buffer_load_dword v{qf1}, v{vT[0]}, s[24:27], s39 offen offset:32
    """)
    stp.init(28, WS_END)
    stp.stamp()
    a.e(f"""
    v_lshlrev_b32 v{vKV}, 4, v{vL}
    s_lshl_b32 s43, s28, 10
    s_add_u32 s42, s43, {WS_KV}
    s_add_u32 s43, s43, {KVL}
    s_mov_b32 s54, -1
    s_cmp_lt_u32 s28, 4
    s_cselect_b32 s55, -1, 0
    """)
    def kvdma(n):
        L = a.newlabel("kfkv")
        sl = (n & 3) * KVP
        a.e(f"""
        s_cmp_ge_u32 s28, 5
        s_cbranch_scc1 {L}
        s_add_u32 m0, s43, {sl}
        s_mov_b64 exec, s[54:55]
        buffer_load_dwordx4 v{vKV}, s[24:27], s42 offen lds
        s_mov_b64 exec, -1
        s_add_u32 s42, s42, {KVP}
        {L}:
        """)
    for n in range(3): kvdma(n)
    a.e(f"""
    v_lshlrev_b32 v{vKa}, 4, v{vHH}
    v_lshl_add_u32 v{vKa}, v{vL31}, 5, v{vKa}
    v_add_u32 v{vKa}, {KVL}, v{vKa}
    v_lshlrev_b32 v{vK2a}, 2, v{vL31}
    v_add_u32 v{vK2a}, {KVL}, v{vK2a}
    s_movk_i32 s39, 288
    v_mul_u32_u24 v{vVa}, s39, v{vHH}
    v_lshl_add_u32 v{vVa}, v{vL31}, 4, v{vVa}
    v_add_u32 v{vVa}, {KVL}, v{vVa}
    s_mov_b32 s50, 0xff800000
    s_mov_b32 s51, 0xff800000
    v_cmp_eq_u32 vcc, 18, v{vL31}
    v_mov_b32 v{vT[0]}, 0x3f803f80
    """)
    for i in range(1, 4): a.e(f"v_mov_b32 v{qf1+i}, 0")
    for b in range(2):
        for i in range(4): a.e(f"v_mov_b32 v{kf1[b]+i}, 0")
        for m in range(2):
            for i in range(4): a.e(f"v_cndmask_b32 v{vf[b][m]+i}, 0, v{vT[0]}, vcc")
    for i in range(16):
        a.e(f"v_mov_b32 v{P+i}, 0\nv_mov_b32 v{O+i}, 0\nv_mov_b32 v{Cn+i}, 0")
    def k_read_list(off):
        L = []
        for b in range(2):
            L.append(f"ds_read_b128 {vr(kf0[b],4)}, v{vKa} offset:{off + b*KVB}")
        L.append("s_mov_b64 exec, s[46:47]")
        for b in range(2):
            L.append(f"ds_read_b32 v{kf1[b]}, v{vK2a} offset:{off + b*KVB + 1024}")
        L.append("s_mov_b64 exec, -1")
        return "\n".join(L)
    def v_read_blk(off, b):
        L = ["s_mov_b64 exec, s[48:49]"]
        for m in range(2):
            L.append(f"ds_read_b128 {vr(vf[b][m],4)}, v{vVa} offset:{off + b*KVB + 1152 + m*576}")
        L.append("s_mov_b64 exec, -1")
        return "\n".join(L)
    def pv(b, m):
        return f"v_mfma_f32_32x32x16_bf16 {vr(O,16)}, {vr(vf[b][m],4)}, {vr(P+8*b+4*m,4)}, {vr(O,16)}"
    def qk1(g, b, half):
        if half == 0:
            return f"v_mfma_f32_32x32x16_bf16 {vr(Sb[g][b],16)}, {vr(kf0[b],4)}, {vr(qf0,4)}, {vr(Cn,16)}"
        return f"v_mfma_f32_32x32x16_bf16 {vr(Sb[g][b],16)}, {vr(kf1[b],4)}, {vr(qf1,4)}, {vr(Sb[g][b],16)}"
    rare = []
    def step(u):
        par = u & 1
        cur = u * KVP; nx2 = ((u + 2) & 3) * KVP
        sv = [Sb[par][b]+r for b in range(2) for r in range(16)]
        mx = [f"v_max3_f32 v{vMx}, v{sv[0]}, v{sv[1]}, v{sv[2]}", f"v_max3_f32 v{vT[0]}, v{sv[3]}, v{sv[4]}, v{sv[5]}"]
        i = 6; tog = 0
        while i + 1 < 32:
            d = vMx if tog == 0 else vT[0]
            mx.append(f"v_max3_f32 v{d}, v{d}, v{sv[i]}, v{sv[i+1]}")
            i += 2; tog ^= 1
        a.e(pv(1, 0))
        a.e(v_read_blk(cur, 0))
        for x in mx[:7]: a.e(x)
        a.e(pv(1, 1))
        for x in mx[7:]: a.e(x)
        Lr = a.newlabel("kfrare"); Lb = a.newlabel("kfback")
        a.e(f"""
        v_max_f32 v{vMx}, v{vMx}, v{vT[0]}
        v_cmp_lt_f32 vcc, s50, v{vMx}
        s_nop 0
        s_cbranch_vccnz {Lr}
        {Lb}:
        """)
        rare.append((Lr, Lb, sv))
        a.e(qk1(par^1, 0, 0))
        a.e(v_read_blk(cur, 1))
        for x in sv[0:6]: a.e(f"v_exp_f32 v{x}, v{x}")
        a.e(qk1(par^1, 1, 0))
        for x in sv[6:12]: a.e(f"v_exp_f32 v{x}, v{x}")
        a.e(qk1(par^1, 0, 1))
        for x in sv[12:18]: a.e(f"v_exp_f32 v{x}, v{x}")
        a.e(qk1(par^1, 1, 1))
        for i in range(8): a.e(f"v_cvt_pk_bf16_f32 v{P+i}, v{sv[2*i]}, v{sv[2*i+1]}")
        a.e("s_waitcnt lgkmcnt(2)\ns_nop 0")
        a.e(pv(0, 0))
        for x in sv[18:24]: a.e(f"v_exp_f32 v{x}, v{x}")
        a.e(k_read_list(nx2))
        a.e(pv(0, 1))
        for x in sv[24:32]: a.e(f"v_exp_f32 v{x}, v{x}")
        a.e("s_nop 0")
        for i in range(8, 16): a.e(f"v_cvt_pk_bf16_f32 v{P+i}, v{sv[2*i]}, v{sv[2*i+1]}")
    a.e(f"s_waitcnt vmcnt(0)\ns_barrier")
    a.e(f"v_cmp_gt_u32 vcc, 32, v{vL}\ns_nop 1\nv_cndmask_b32 v{qf1}, 0, v{qf1}, vcc")
    a.e(k_read_list(0))
    a.e("s_waitcnt lgkmcnt(0)\ns_nop 0")
    for b in range(2): a.e(qk1(0, b, 0))
    for b in range(2): a.e(qk1(0, b, 1))
    a.e(k_read_list(KVP))
    a.e(f"""
    s_cmp_lt_u32 s28, 6
    s_cbranch_scc1 kf_nopf
    s_mov_b32 s56, s8
    s_mov_b32 s57, s9
    s_mov_b32 s58, {D*D*2}
    s_mov_b32 s59, 0x00020000
    s_mov_b32 s60, s10
    s_mov_b32 s61, s11
    s_mov_b32 s62, {FH*D*2}
    s_mov_b32 s63, 0x00020000
    s_lshl_b32 s39, s2, 7
    v_and_b32 v{vT[1]}, 127, v0
    v_add_u32 v{vT[1]}, s39, v{vT[1]}
    v_lshlrev_b32 v{vT[1]}, 7, v{vT[1]}
    buffer_load_dword v{vKV}, v{vT[1]}, s[56:59], 0 offen
    buffer_load_dword v{vKV}, v{vT[1]}, s[60:63], 0 offen
    kf_nopf:
    s_waitcnt lgkmcnt(0)
    s_nop 7
    s_nop 7
    """)
    stp.stamp()
    a.e("s_mov_b32 s35, 0")
    a.label("kf_aloop")
    for u in range(4):
        L = a.newlabel("kfsk")
        a.e(f"s_cmp_ge_u32 s35, {29-u}\ns_cbranch_scc1 {L}")
        kvdma(u + 3)
        a.label(L)
        if not os.environ.get("KF_NOA"): step(u)
        if u == 3:
            a.e(f"""
            s_add_u32 s35, s35, 4
            s_cmp_ge_u32 s35, 32
            s_cbranch_scc1 kf_adone
            """)
        L = a.newlabel("kfw")
        a.e(f"s_cmp_ge_u32 s28, 5\ns_cbranch_scc1 {L}\ns_waitcnt vmcnt(0)\n{L}:\ns_waitcnt lgkmcnt(0)\ns_barrier")
    stp.stamp()
    a.e("s_branch kf_aloop")
    a.label("kf_adone")
    a.e("s_waitcnt lgkmcnt(0)\ns_nop 1")
    a.e(pv(1, 0)); a.e(pv(1, 1))
    a.e("s_nop 7\ns_nop 7")
    stp.stamp()
    a.e(f"""
    v_mov_b32 v{vT[0]}, v{O+10}
    v_mov_b32 v{vT[1]}, v{O+10}
    s_nop 1
    v_permlane32_swap_b32 v{vT[1]}, v{vT[0]}
    v_cmp_gt_u32 vcc, 32, v{vL}
    s_nop 1
    v_cndmask_b32 v{vT[0]}, v{vT[1]}, v{O+10}, vcc
    v_rcp_f32 v{vT[0]}, v{vT[0]}
    s_nop 0
    """)
    for r in range(10): a.e(f"v_mul_f32 v{O+r}, v{O+r}, v{vT[0]}")
    for i in range(5): a.e(f"v_cvt_pk_bf16_f32 v{P+i}, v{O+2*i}, v{O+2*i+1}")
    a.e(f"""
    s_movk_i32 s40, 5760
    v_lshlrev_b32 v{vT[1]}, 3, v{vHH}
    v_mad_u32_u24 v{vT[1]}, v{vL31}, s40, v{vT[1]}
    s_mul_i32 s39, s31, 5760
    s_mul_i32 s40, s30, 36
    s_add_u32 s39, s39, s40
    s_add_u32 s39, s39, {WS_OH}
    buffer_store_dwordx2 {vr(P,2)}, v{vT[1]}, s[24:27], s39 offen
    buffer_store_dwordx2 {vr(P+2,2)}, v{vT[1]}, s[24:27], s39 offen offset:16
    s_mov_b64 exec, s[46:47]
    buffer_store_dword v{P+4}, v{vT[1]}, s[24:27], s39 offen offset:32
    s_endpgm
    """)
    for (Lr, Lb, sv) in rare:
        a.label(Lr)
        a.e(f"""
        v_mov_b32 v{vT[1]}, v{vMx}
        s_nop 1
        v_permlane32_swap_b32 v{vT[1]}, v{vMx}
        s_nop 1
        v_max_f32 v{vMx}, v{vMx}, v{vT[1]}
        v_max_f32 v{vMx}, s51, v{vMx}
        v_max_f32 v{vAl}, 0, v{vMx}
        v_exp_f32 v{vAl}, -v{vAl}
        s_mov_b32 s50, 0x42700000
        s_mov_b32 s51, 0
        """)
        for x in sv: a.e(f"v_sub_f32 v{x}, v{x}, v{vMx}")
        for r in range(16): a.e(f"v_sub_f32 v{Cn+r}, v{Cn+r}, v{vMx}")
        for r in range(12): a.e(f"v_mul_f32 v{O+r}, v{O+r}, v{vAl}")
        a.e(f"s_nop 1\ns_branch {Lb}")
    a.label("kf_gemm")
    va = VAlloc(2)
    vL = va.get(); vL15 = va.get(); vG = va.get()
    vT0 = va.get(8, 4); vT = [vT0+i for i in range(8)]
    vD = [va.get(), va.get(), va.get()]
    vA = [[va.get() for k in range(2)] for h in range(2)]; vB = [[va.get() for k in range(2)] for h in range(2)]
    vZ = [va.get(), va.get()]; vH = [va.get(), va.get()]; vBs = [va.get(), va.get()]
    acc = [[va.get(4, 4) for j in range(2)] for i in range(9)]
    fa = [va.get(4, 4) for i in range(9)]
    fb = [[va.get(4, 4) for j in range(2)] for s in range(2)]
    stp = Stamps(a, bool(os.environ.get('STAMPSF')), 24, vT[6], wg=int(os.environ.get('STWG','0')))
    nvG = va.n
    z1r = [[fa[i] + 2*j for j in range(2)] for i in range(9)]
    a.e(f"""
    v_and_b32 v{vL}, 63, v0
    v_and_b32 v{vL15}, 15, v{vL}
    v_lshrrev_b32 v{vG}, 4, v{vL}
    s_and_b32 s29, s28, 3
    s_and_b32 s39, s2, 7
    s_lshr_b32 s40, s2, 3
    s_and_b32 s41, s39, 3
    s_lshl_b32 s41, s41, 2
    s_and_b32 s42, s40, 3
    s_add_u32 s31, s41, s42
    s_lshr_b32 s41, s39, 2
    s_lshl_b32 s41, s41, 3
    s_lshr_b32 s42, s40, 2
    s_add_u32 s32, s41, s42
    s_mul_i32 s33, s31, 144
    s_lshl_b32 s34, s32, 7
    v_lshrrev_b32 v{vT[0]}, 3, v{vL}
    v_and_b32 v{vT[1]}, 7, v{vL}
    v_lshrrev_b32 v{vT[2]}, 1, v{vT[0]}
    v_xor_b32 v{vT[1]}, v{vT[1]}, v{vT[2]}
    v_lshlrev_b32 v{vT[0]}, 12, v{vT[0]}
    v_lshl_add_u32 v{vD[0]}, v{vT[1]}, 4, v{vT[0]}
    v_xor_b32 v{vD[1]}, 64, v{vD[0]}
    s_and_b32 s39, s29, 1
    s_lshl_b32 s39, s39, 6
    v_xor_b32 v{vD[2]}, s39, v{vD[0]}
    v_bfe_u32 v{vT[1]}, v{vL15}, 1, 3
    v_xor_b32 v{vT[0]}, v{vG}, v{vT[1]}
    v_lshlrev_b32 v{vT[0]}, 4, v{vT[0]}
    v_lshl_add_u32 v{vA[0][0]}, v{vL15}, 7, v{vT[0]}
    v_xor_b32 v{vA[0][1]}, 64, v{vA[0][0]}
    s_lshl_b32 s39, s29, 12
    s_add_u32 s39, s39, {BOFF}
    """)
    for k in range(2):
        a.e(f"""
        v_add_u32 v{vA[1][k]}, {2*STG}, v{vA[0][k]}
        v_add_u32 v{vB[0][k]}, s39, v{vA[0][k]}
        v_add_u32 v{vB[1][k]}, {2*STG}, v{vB[0][k]}
        """)
    a.e(f"""
    s_mov_b32 s16, s4
    s_mov_b32 s17, s5
    s_mov_b32 s18, {S*S*2}
    s_mov_b32 s19, 0x00020000
    s_mov_b32 s20, s6
    s_mov_b32 s21, s7
    s_mov_b32 s22, {S*2}
    s_mov_b32 s23, 0x00020000
    s_lshl_b32 s39, s29, 5
    s_add_u32 s40, s33, s39
    s_lshl_b32 s44, s40, 12
    s_add_u32 s44, s44, {WS_Z2N}
    s_lshl_b32 s41, s29, 3
    s_add_u32 s41, s41, 128
    s_add_u32 s41, s41, s33
    s_lshl_b32 s45, s41, 12
    s_add_u32 s45, s45, {WS_Z2N}
    s_add_u32 s40, s34, s39
    s_lshl_b32 s46, s40, 12
    s_lshl_b32 s47, s29, 12
    s_lshl_b32 s48, s29, 10
    s_add_u32 s48, s48, {16*1024}
    s_add_u32 s49, s47, {BOFF}
    """)
    stp.init(28, WS_END)
    stp.stamp()
    def dma_list(stage):
        sl = (stage & 3) * STG; k = stage * 128
        L = []
        for q in range(4):
            L.append(f"""
            s_add_u32 m0, s47, {sl+1024*q}
            s_add_u32 s50, s44, {k+8*4096*q}
            buffer_load_dwordx4 v{vD[q&1]}, s[24:27], s50 offen lds
            """)
        for q in range(4):
            L.append(f"""
            s_add_u32 m0, s49, {sl+1024*q}
            s_add_u32 s50, s46, {k+8*4096*q}
            buffer_load_dwordx4 v{vD[q&1]}, s[16:19], s50 offen lds
            """)
        lb = a.newlabel("kfd")
        L.append(f"""
        s_cmp_ge_u32 s29, 2
        s_cbranch_scc1 {lb}
        s_add_u32 m0, s48, {sl}
        s_add_u32 s50, s45, {k}
        buffer_load_dwordx4 v{vD[2]}, s[24:27], s50 offen lds
        {lb}:
        """)
        return L
    def rd_a(n, i):
        stage, kk = n >> 1, n & 1
        sl = stage & 3; hb = sl >> 1; off = (sl & 1) * STG
        return f"ds_read_b128 {vr(fa[i],4)}, v{vA[hb][kk]} offset:{off + i*2048}"
    def rd_b(n, j):
        stage, kk = n >> 1, n & 1
        sl = stage & 3; hb = sl >> 1; off = (sl & 1) * STG
        return f"ds_read_b128 {vr(fb[n&1][j],4)}, v{vB[hb][kk]} offset:{off + j*2048}"
    for s_ in range(3):
        for x in dma_list(s_): a.e(x)
    a.e("s_waitcnt vmcnt(8)\ns_barrier")
    for j in range(2): a.e(rd_b(0, j))
    for i in range(9): a.e(rd_a(0, i))
    NK = 2*NSTG
    a.dropping = True
    for n in range(NK):
        stage, kk = n >> 1, n & 1
        if kk == 0:
            hooks = dma_list(stage+3) if stage + 3 < NSTG else []
            if stage == NSTG - 3:
                a.e(f"""
                s_lshl_b32 s39, s29, 5
                s_add_u32 s39, s39, s34
                v_add_u32 v{vT[0]}, s39, v{vL15}
                v_lshlrev_b32 v{vT[1]}, 3, v{vG}
                s_movk_i32 s40, 4608
                v_mad_u32_u24 v{vZ[0]}, v{vT[0]}, s40, v{vT[1]}
                v_add_u32 v{vZ[1]}, {16*4608}, v{vZ[0]}
                s_movk_i32 s40, 5760
                v_mad_u32_u24 v{vH[0]}, v{vT[0]}, s40, v{vT[1]}
                v_add_u32 v{vH[1]}, {16*5760}, v{vH[0]}
                v_lshlrev_b32 v{vT[0]}, 1, v{vT[0]}
                s_lshl_b32 s42, s33, 1
                s_add_u32 s43, s42, {WS_OH + 1152}
                s_add_u32 s42, s42, {WS_Z1}
                buffer_load_ushort v{vBs[0]}, v{vT[0]}, s[20:23], 0 offen
                buffer_load_ushort v{vBs[1]}, v{vT[0]}, s[20:23], 0 offen offset:32
                """)
        last = (n == NK - 1)
        if not last:
            for j in range(2): a.e(rd_b(n+1, j))
        for i in range(9):
            young = (8 - i) + (0 if last else 2 + i)
            a.e(f"s_waitcnt lgkmcnt({min(15, young)})")
            for j in range(2):
                c = "0" if n == 0 else vr(acc[i][j], 4)
                a.e(f"v_mfma_f32_16x16x32_bf16 {vr(acc[i][j],4)}, {vr(fa[i],4)}, {vr(fb[n&1][j],4)}, {c}")
            if not last: a.e(rd_a(n+1, i))
            else:
                for j in range(2):
                    a.e(f"buffer_load_dwordx2 {vr(z1r[i][j],2)}, v{vZ[j]}, s[24:27], s42 offen offset:{i*32}")
            if hooks and i % 2 == 0: a.e(hooks.pop(0))
        if kk == 1:
            for x in hooks: a.e(x)
            hooks = []
            if stage + 1 < NSTG:
                if stage + 3 < NSTG: a.e("s_waitcnt vmcnt(8)")
                elif stage + 2 < NSTG: a.e("s_waitcnt vmcnt(0)")
                a.e("s_barrier")
            if stage % 4 == 3: stp.stamp()
    a.dropping = False
    a.e("s_waitcnt vmcnt(0)\ns_nop 7")
    for j in range(2):
        a.e(f"v_lshlrev_b32 v{vBs[j]}, 16, v{vBs[j]}")
    for i in range(9):
        for j in range(2):
            ac = acc[i][j]; z = z1r[i][j]
            for r in range(4): a.e(f"v_add_f32 v{ac+r}, v{ac+r}, v{vBs[j]}")
            a.e(f"""
            v_lshlrev_b32 v{vT[4]}, 16, v{z}
            v_and_b32 v{vT[5]}, 0xffff0000, v{z}
            v_lshlrev_b32 v{vT[6]}, 16, v{z+1}
            v_and_b32 v{vT[7]}, 0xffff0000, v{z+1}
            """)
            for r in range(4): a.e(f"v_mul_f32 v{ac+r}, v{ac+r}, v{vT[4+r]}")
            a.e(f"""
            v_cvt_pk_bf16_f32 v{ac}, v{ac}, v{ac+1}
            v_cvt_pk_bf16_f32 v{ac+1}, v{ac+2}, v{ac+3}
            buffer_store_dwordx2 {vr(ac,2)}, v{vH[j]}, s[24:27], s43 offen offset:{i*32}
            """)
    stp.stamp()
    a.label(END)
    a.e("s_endpgm")
    a.end_kernel(name, max(nvA, nvG))
    print("kf vgprs", nvA, nvG)
```

```python
from asmlib import *
from layout import *
from k1 import ln_scalars
import os

def gen_kn(a):
    name = "kn_kernel"
    a.begin_kernel(name, 256, 512, 1024)
    va = VAlloc(1)
    vT0 = va.get(8, 4); vT = [vT0+i for i in range(8)]
    vZo = va.get(); vSo = va.get()
    zr = va.get(20, 4)
    sreg = va.get(32, 4)
    nrm = sreg + 16
    pf = va.get(2)
    nv = va.n
    END = "kn_end"
    a.e(f"""
    s_cmp_ge_u32 s2, 256
    s_cbranch_scc1 {END}
    s_load_dwordx2 s[14:15], s[0:1], 96
    s_load_dwordx2 s[4:5], s[0:1], 32
    s_load_dwordx2 s[6:7], s[0:1], 56
    s_load_dwordx2 s[8:9], s[0:1], 72
    v_lshrrev_b32 v{vT[0]}, 6, v0
    s_nop 0
    v_readfirstlane_b32 s28, v{vT[0]}
    s_mov_b32 s45, 0xffff0000
    s_lshr_b32 s32, s2, 4
    s_and_b32 s33, s2, 15
    v_and_b32 v{vT[3]}, 15, v0
    v_lshrrev_b32 v{vT[4]}, 4, v0
    v_lshlrev_b32 v{vT[4]}, 12, v{vT[4]}
    v_lshl_add_u32 v{vZo}, v{vT[3]}, 4, v{vT[4]}
    v_lshlrev_b32 v{vSo}, 3, v0
    s_mul_i32 s39, s32, {144*4096}
    s_lshl_b32 s40, s33, 8
    s_add_u32 s39, s39, s40
    s_add_u32 s34, s39, {WS_Z2N}
    s_add_u32 s36, s39, {WS_Z2T}
    s_lshl_b32 s39, s2, 8
    v_and_b32 v{vT[2]}, 255, v0
    v_add_u32 v{vT[2]}, s39, v{vT[2]}
    v_lshlrev_b32 v{vT[2]}, 7, v{vT[2]}
    s_waitcnt lgkmcnt(0)
    s_mov_b32 s24, s14
    s_mov_b32 s25, s15
    s_mov_b32 s26, 0x10000000
    s_mov_b32 s27, 0x00020000
    s_mov_b32 s52, s6
    s_mov_b32 s53, s7
    s_mov_b32 s54, {S*S*2}
    s_mov_b32 s55, 0x00020000
    s_mov_b32 s56, s4
    s_mov_b32 s57, s5
    s_mov_b32 s58, {D*D*2}
    s_mov_b32 s59, 0x00020000
    s_mov_b32 s60, s8
    s_mov_b32 s61, s9
    s_mov_b32 s62, {FH*D*2}
    s_mov_b32 s63, 0x00020000
    s_cmp_ge_u32 s28, 2
    s_cbranch_scc1 kn_nostat0
    s_lshl_b32 s39, s33, 10
    s_add_u32 s39, s39, {WS_STAT}
    """)
    for p in range(16):
        a.e(f"buffer_load_dwordx2 {vr(sreg+2*p,2)}, v{vSo}, s[24:27], s39 offen\ns_add_u32 s39, s39, 16384")
    a.label("kn_nostat0")
    for p in range(4):
        a.e(f"buffer_load_dwordx4 {vr(zr+4*p,4)}, v{vZo}, s[24:27], s36 offen\ns_add_u32 s36, s36, {32*4096}")
    a.e(f"""
    s_cmp_ge_u32 s28, 4
    s_cbranch_scc1 kn_a
    buffer_load_dwordx4 {vr(zr+16,4)}, v{vZo}, s[24:27], s36 offen
    kn_a:
    s_cmp_ge_u32 s28, 2
    s_cbranch_scc1 kn_nostat
    s_waitcnt vmcnt(5)
    """)
    for p in range(1, 16):
        a.e(f"v_add_f32 v{sreg}, v{sreg}, v{sreg+2*p}\nv_add_f32 v{sreg+1}, v{sreg+1}, v{sreg+2*p+1}")
    ln_scalars(a, sreg, sreg+1, FH, sreg+2, sreg+3, vT[4], vT[5], vT[6])
    a.e(f"ds_write_b64 v{vSo}, {vr(sreg+2,2)}")
    a.label("kn_nostat")
    a.e(f"""
    s_waitcnt lgkmcnt(0)
    s_barrier
    v_lshlrev_b32 v{vT[5]}, 6, v{vT[3]}
    """)
    for i in range(4):
        a.e(f"ds_read_b128 {vr(nrm+4*i,4)}, v{vT[5]} offset:{16*i}")
    a.e("s_waitcnt vmcnt(0) lgkmcnt(0)")
    a.e(f"""
    s_cmp_ge_u32 s28, 4
    s_cbranch_scc1 kn_pf3
    buffer_load_dword v{pf}, v{vT[2]}, s[52:55], 0 offen
    kn_pf3:
    """)
    def norm_chunk(p):
        for i in range(4):
            w = zr + 4*p + i
            a.e(f"""
            v_lshlrev_b32 v{vT[0]}, 16, v{w}
            v_and_b32 v{vT[1]}, s45, v{w}
            v_fma_f32 v{vT[0]}, v{vT[0]}, v{nrm+4*i}, v{nrm+4*i+1}
            v_fma_f32 v{vT[1]}, v{vT[1]}, v{nrm+4*i+2}, v{nrm+4*i+3}
            v_cvt_pk_bf16_f32 v{w}, v{vT[0]}, v{vT[1]}
            """)
        a.e(f"buffer_store_dwordx4 {vr(zr+4*p,4)}, v{vZo}, s[24:27], s34 offen\ns_add_u32 s34, s34, {32*4096}")
    for p in range(4): norm_chunk(p)
    a.e(f"s_cmp_ge_u32 s28, 4\ns_cbranch_scc1 {END}")
    norm_chunk(4)
    a.label(END)
    a.e("s_endpgm")
    a.end_kernel(name, nv, 80)
    print("kn vgprs", nv)
```

```python
import sys, os
from asmlib import *
from k1 import gen_k1
a = Asm()
gen_k1(a)
nk = int(sys.argv[1]) if len(sys.argv) > 1 else 4
if os.environ.get("OLD"):
    from k2 import gen_k2
    from k3 import gen_k3
    if nk >= 2: gen_k2(a)
    if nk >= 3: gen_k3(a)
else:
    from kn import gen_kn
    from kf import gen_kf
    if nk >= 2: gen_kn(a)
    if nk >= 3: gen_kf(a)
if nk >= 4:
    from k4 import gen_k4
    gen_k4(a)
hdr = open("parallel_sum__grouped_kv_mqa__mixer_gmlp__prompt.s.ref").read().split("\n")
hdr = "\n".join(l for l in hdr[:14]) + "\n"
open("parallel_sum__grouped_kv_mqa__mixer_gmlp__prompt.s", "w").write(a.text(hdr))
```

```python
from asmlib import *
from layout import *
import math, os

GK0 = -2.0*math.log2(math.e)*math.sqrt(2.0/math.pi)
GK1 = GK0*0.044715

def rnd_bf16(a, v, tmp):
    a.e(f"v_cvt_pk_bf16_f32 v{tmp}, v{v}, v{v}")
    a.e(f"v_lshlrev_b32 v{v}, 16, v{tmp}")

def ln_scalars(a, vsum, vsq, n, vr_out, vnb_out, t0, t1, t2):
    a.e(f"""
    v_mul_f32 v{t1}, 0x{f2u(1.0/n):08x}, v{vsum}
    v_mul_f32 v{t0}, 0x{f2u(1.0/n):08x}, v{vsq}
    v_fma_f32 v{t0}, -v{t1}, v{t1}, v{t0}
    v_max_f32 v{t0}, 0, v{t0}
    """)
    rnd_bf16(a, t1, t2)
    rnd_bf16(a, t0, t2)
    a.e(f"v_add_f32 v{t0}, 0x{f2u(1e-5):08x}, v{t0}")
    rnd_bf16(a, t0, t2)
    a.e(f"v_sqrt_f32 v{t0}, v{t0}\ns_nop 0")
    rnd_bf16(a, t0, t2)
    a.e(f"v_rcp_f32 v{vr_out}, v{t0}\ns_nop 0")
    a.e(f"v_mul_f32 v{vnb_out}, v{t1}, v{vr_out}")
    a.e(f"v_sub_f32 v{vnb_out}, 0, v{vnb_out}")

def gelu_regs(a, regs, tmps, sK1, vK0, hook=None):
    n = len(tmps)
    hook = hook or (lambda: None)
    for i in range(0, len(regs), n):
        grp = regs[i:i+n]
        for x, t in zip(grp, tmps): a.e(f"v_mul_f32 v{t}, v{x}, v{x}")
        for x, t in zip(grp, tmps): a.e(f"v_fma_f32 v{t}, v{t}, s{sK1}, v{vK0}")
        for x, t in zip(grp, tmps): a.e(f"v_mul_f32 v{t}, v{t}, v{x}")
        hook()
        for x, t in zip(grp, tmps): a.e(f"v_exp_f32 v{t}, v{t}")
        for x, t in zip(grp, tmps): a.e(f"v_add_f32 v{t}, 1.0, v{t}")
        hook()
        for x, t in zip(grp, tmps): a.e(f"v_rcp_f32 v{t}, v{t}")
        for x, t in zip(grp, tmps): a.e(f"v_mul_f32 v{x}, v{x}, v{t}")
        hook()

def gelu_items(regs, tmps, sK1, vK0):
    L = []
    n = len(tmps)
    for i in range(0, len(regs), n):
        grp = regs[i:i+n]
        for x, t in zip(grp, tmps): L.append(f"v_mul_f32 v{t}, v{x}, v{x}")
        for x, t in zip(grp, tmps): L.append(f"v_fma_f32 v{t}, v{t}, s{sK1}, v{vK0}")
        for x, t in zip(grp, tmps): L.append(f"v_mul_f32 v{t}, v{t}, v{x}")
        for x, t in zip(grp, tmps): L.append(f"v_exp_f32 v{t}, v{t}")
        for x, t in zip(grp, tmps): L.append(f"v_add_f32 v{t}, 1.0, v{t}")
        for x, t in zip(grp, tmps): L.append(f"v_rcp_f32 v{t}, v{t}")
        for x, t in zip(grp, tmps): L.append(f"v_mul_f32 v{x}, v{x}, v{t}")
    return L

def gen_k1(a):
    name = "k1_kernel"
    BUF = 36864
    a.begin_kernel(name, 256, 512, 4*BUF)
    va = VAlloc(1)
    vL = va.get(); vL15 = va.get(); vG = va.get(); vL31 = va.get(); vHH = va.get()
    vRowl = va.get(); vChunk16 = va.get(); vDma = va.get()
    vW = va.get(); vWb = va.get()
    vK0 = va.get()
    vO = [va.get(), va.get()]
    vT0 = va.get(8, 4); vT = [vT0+i for i in range(8)]
    xr = [va.get(4, 4) for t in range(36)]
    acc = va.get(16, 4)
    NS = 4
    Wf = [va.get(4, 4) for s in range(NS)]
    prv = va.get(16, 4)
    st = va.get(32, 4)
    en = bool(os.environ.get('STAMPS'))
    vst = va.get(2) if en else 0
    stp = Stamps(a, en, 24, vst, wg=int(os.environ.get('STWG','0')))
    nv = va.n
    ones = st + 28
    adr = st + 16
    wpre = Wf[0]
    assert prv == Wf[0] + 16 and st == prv + 16
    END = "k1_end"
    a.e(f"""
    s_cmp_ge_u32 s2, 256
    s_cbranch_scc1 {END}
    s_load_dwordx4 s[4:7], s[0:1], 0
    s_load_dwordx4 s[8:11], s[0:1], 16
    s_load_dwordx4 s[12:15], s[0:1], 48
    s_load_dwordx2 s[64:65], s[0:1], 96
    v_lshrrev_b32 v{vT[0]}, 6, v0
    v_and_b32 v{vL}, 63, v0
    s_nop 0
    v_readfirstlane_b32 s28, v{vT[0]}
    v_and_b32 v{vL15}, 15, v{vL}
    v_lshrrev_b32 v{vG}, 4, v{vL}
    v_and_b32 v{vL31}, 31, v{vL}
    v_lshrrev_b32 v{vHH}, 5, v{vL}
    s_lshr_b32 s29, s28, 2
    s_and_b32 s30, s28, 3
    s_and_b32 s39, s2, 7
    s_lshr_b32 s40, s2, 3
    s_and_b32 s41, s39, 3
    s_lshl_b32 s41, s41, 2
    s_and_b32 s42, s40, 3
    s_add_u32 s31, s41, s42
    s_lshr_b32 s41, s39, 2
    s_lshl_b32 s41, s41, 3
    s_lshr_b32 s42, s40, 2
    s_add_u32 s32, s41, s42
    s_mul_i32 s33, s32, 10
    s_min_u32 s39, s32, 4
    s_add_u32 s33, s33, s39
    s_cmp_lt_u32 s32, 4
    s_cselect_b32 s34, 11, 10
    s_lshl_b32 s36, s31, 7
    s_lshl_b32 s39, s30, 5
    s_add_u32 s36, s36, s39
    s_mov_b32 s44, 0x{f2u(GK1):08x}
    s_mov_b32 s45, 0xffff0000
    """)
    a.e(f"""
    v_lshrrev_b32 v{vT[0]}, 3, v{vL}
    v_and_b32 v{vT[1]}, 7, v{vL}
    v_lshrrev_b32 v{vT[2]}, 1, v{vT[0]}
    v_xor_b32 v{vT[1]}, v{vT[1]}, v{vT[2]}
    v_mul_u32_u24 v{vT[0]}, 1152, v{vT[0]}
    v_lshl_add_u32 v{vT[4]}, v{vT[1]}, 4, v{vT[0]}
    v_xor_b32 v{vT[1]}, 4, v{vT[1]}
    v_lshl_add_u32 v{vT[5]}, v{vT[1]}, 4, v{vT[0]}
    s_lshl_b32 s39, s31, 7
    s_lshl_b32 s40, s28, 4
    s_add_u32 s39, s39, s40
    s_mul_i32 s39, s39, 1152
    s_lshl_b32 s43, s28, 11
    s_waitcnt lgkmcnt(0)
    s_mov_b32 s16, s4
    s_mov_b32 s17, s5
    s_mov_b32 s18, {S*D*2}
    s_mov_b32 s19, 0x00020000
    s_mov_b32 s24, s64
    s_mov_b32 s25, s65
    s_mov_b32 s26, 0x10000000
    s_mov_b32 s27, 0x00020000
    s_mov_b32 s23, 0x00020000
    """)
    stp.init(28, WS_END)
    stp.stamp()
    a.e(f"""
    v_mov_b32 v{vK0}, 0x{f2u(GK0):08x}
    v_lshrrev_b32 v{vRowl}, 2, v{vL}
    v_and_b32 v{vT[0]}, 3, v{vL}
    v_lshlrev_b32 v{vChunk16}, 4, v{vT[0]}
    v_bfe_u32 v{vT[0]}, v{vL}, 2, 2
    v_lshl_add_u32 v{vT[0]}, v{vHH}, 3, v{vT[0]}
    v_lshlrev_b32 v{vT[0]}, 6, v{vT[0]}
    v_and_b32 v{vT[1]}, 3, v{vL}
    v_lshl_add_u32 v{vT[0]}, v{vT[1]}, 3, v{vT[0]}
    v_and_b32 v{vT[1]}, 1, v{vG}
    v_lshl_add_u32 v{vW}, v{vT[1]}, 5, v{vT[0]}
    """)
    def dma_setup(sBi, sJ):
        a.e(f"""
        s_mov_b32 s20, s12
        s_mov_b32 s21, s13
        s_mov_b32 s22, {D*F*2}
        s_movk_i32 s37, 9216
        s_sub_u32 s38, s{sBi}, 20
        s_lshl_b32 s38, s38, 6
        s_lshl_b32 s39, s{sBi}, 6
        s_cmp_lt_u32 s{sBi}, 20
        s_cselect_b32 s20, s10, s20
        s_cselect_b32 s21, s11, s21
        s_cselect_b32 s22, {D*DH*2}, s22
        s_cselect_b32 s37, 36, s37
        s_cselect_b32 s38, 0, s38
        s_cmp_lt_u32 s{sBi}, 19
        s_cselect_b32 s20, s8, s20
        s_cselect_b32 s21, s9, s21
        s_cmp_lt_u32 s{sBi}, 18
        s_cselect_b32 s20, s6, s20
        s_cselect_b32 s21, s7, s21
        s_cselect_b32 s22, {D*D*2}, s22
        s_cselect_b32 s37, 1152, s37
        s_cselect_b32 s38, s39, s38
        v_mad_u32_u24 v{vDma}, v{vRowl}, s37, v{vChunk16}
        s_lshl_b32 s58, s37, 4
        s_mul_i32 s40, s30, 9
        s_mul_i32 s59, s40, s58
        s_add_u32 s59, s59, s38
        s_and_b32 s57, s{sJ}, 3
        s_mul_i32 s57, s57, {BUF}
        s_lshl_b32 s40, s40, 10
        s_add_u32 s57, s57, s40
        s_cmp_ge_u32 s{sJ}, s34
        s_cselect_b32 s22, 0, s22
        """)
    dma_item = f"""
        s_mov_b32 m0, s57
        s_add_u32 s57, s57, 1024
        buffer_load_dwordx4 v{vDma}, s[20:23], s59 offen lds
        s_add_u32 s59, s59, s58
        """
    a.e("s_add_u32 s41, s33, s29")
    dma_setup(41, 29)
    a.e("s_mov_b32 s56, s57")
    for i in range(9):
        a.e(f"buffer_load_dwordx4 {vr(wpre+4*i,4)}, v{vDma}, s[20:23], s59 offen\ns_add_u32 s59, s59, s58")
    a.e(f"""
    s_lshl_b32 s39, s31, 7
    s_lshl_b32 s40, s28, 4
    s_add_u32 s39, s39, s40
    s_mul_i32 s39, s39, 1152
    """)
    for cg in range(9):
        for h in range(2):
            a.e(f"""
            s_add_u32 m0, s43, {cg*16384 + h*1024}
            s_add_u32 s40, s39, {cg*128 + h*8*1152}
            buffer_load_dwordx4 v{vT[4+h]}, s[16:19], s40 offen lds
            """)
    a.e(f"""
    s_cmp_ge_u32 s28, 4
    s_cbranch_scc1 k1_pf2
    v_mul_u32_u24 v{vT[1]}, 10923, v0
    v_lshrrev_b32 v{vT[1]}, 16, v{vT[1]}
    v_mul_u32_u24 v{vT[2]}, 6, v{vT[1]}
    v_sub_u32 v{vT[2]}, v0, v{vT[2]}
    s_mul_i32 s40, s31, 36
    v_add_u32 v{vT[1]}, s40, v{vT[1]}
    v_min_u32 v{vT[1]}, 575, v{vT[1]}
    v_mul_lo_u32 v{vT[1]}, v{vT[1]}, s37
    v_lshl_add_u32 v{vT[1]}, v{vT[2]}, 7, v{vT[1]}
    buffer_load_dword v{vT[3]}, v{vT[1]}, s[20:23], s38 offen
    s_branch k1_pf3
    k1_pf2:
    s_mov_b32 s52, s14
    s_mov_b32 s53, s15
    s_mov_b32 s54, {S*S*2}
    s_mov_b32 s55, 0x00020000
    s_lshl_b32 s39, s2, 8
    v_and_b32 v{vT[2]}, 255, v0
    v_add_u32 v{vT[2]}, s39, v{vT[2]}
    v_lshlrev_b32 v{vT[2]}, 7, v{vT[2]}
    buffer_load_dword v{vT[3]}, v{vT[2]}, s[52:55], 0 offen
    k1_pf3:
    """)
    a.e(f"""
    s_lshl_b32 s39, s28, 4
    v_add_u32 v{vT[0]}, s39, v{vL15}
    v_bfe_u32 v{vT[1]}, v{vL15}, 1, 3
    v_lshlrev_b32 v{vT[0]}, 7, v{vT[0]}
    v_xor_b32 v{vT[2]}, v{vG}, v{vT[1]}
    v_lshl_add_u32 v{adr}, v{vT[2]}, 4, v{vT[0]}
    v_xor_b32 v{adr+1}, 64, v{adr}
    """)
    for r in range(1, 3):
        for p in range(2): a.e(f"v_add_u32 v{adr+2*r+p}, {65536*r}, v{adr+p}")
    for i in range(4): a.e(f"v_mov_b32 v{ones+i}, 0x3f803f80")
    a.e(f"""
    v_and_b32 v{vT[0]}, 3, v{vL}
    v_cmp_eq_u32 s[46:47], 1, v{vT[0]}
    v_cmp_eq_u32 s[48:49], 2, v{vT[0]}
    v_cmp_eq_u32 s[50:51], 3, v{vT[0]}
    v_lshrrev_b32 v{vT[1]}, 2, v{vL15}
    v_lshlrev_b32 v{vT[1]}, 4, v{vT[1]}
    v_add_u32 v{vT[1]}, v{vT[1]}, v{vL15}
    v_lshlrev_b32 v{vT[7]}, 2, v{vT[1]}
    s_waitcnt vmcnt(1)
    s_barrier
    """)
    stp.stamp()
    def ln_addr(t):
        cg = t >> 1
        return adr + 2*(cg >> 2) + (t & 1), (cg & 3) * 16384
    for t in range(18):
        r, o = ln_addr(t)
        a.e(f"ds_read_b128 {vr(xr[t],4)}, v{r} offset:{o}")
    for t in range(18):
        a.e(f"s_waitcnt lgkmcnt({min(15,17-t)})")
        c0 = "0" if t == 0 else vr(acc, 4)
        c1 = "0" if t == 0 else vr(acc+4, 4)
        a.e(f"v_mfma_f32_16x16x32_bf16 {vr(acc,4)}, {vr(ones,4)}, {vr(xr[t],4)}, {c0}")
        a.e(f"v_mfma_f32_16x16x32_bf16 {vr(acc+4,4)}, {vr(xr[t],4)}, {vr(xr[t],4)}, {c1}")
    a.e("s_nop 7\ns_nop 3")
    q = acc+4
    a.e(f"""
    v_cndmask_b32 v{vT[0]}, v{q}, v{q+1}, s[46:47]
    v_cndmask_b32 v{vT[0]}, v{vT[0]}, v{q+2}, s[48:49]
    v_cndmask_b32 v{vT[0]}, v{vT[0]}, v{q+3}, s[50:51]
    ds_bpermute_b32 v{vT[4]}, v{vT[7]}, v{vT[0]}
    s_waitcnt lgkmcnt(0)
    """)
    ln_scalars(a, acc, vT[4], D, vT[2], vT[5], vT[0], vT[1], vT[6])
    for t in range(18):
        for i in range(4):
            w = xr[t] + i
            lo, hi = (vT[0], vT[1]) if not (i & 1) else (vT[6], vT[7])
            a.e(f"""
            v_lshlrev_b32 v{lo}, 16, v{w}
            v_and_b32 v{hi}, s45, v{w}
            v_fma_f32 v{lo}, v{lo}, v{vT[2]}, v{vT[5]}
            v_fma_f32 v{hi}, v{hi}, v{vT[2]}, v{vT[5]}
            v_cvt_pk_bf16_f32 v{w}, v{lo}, v{hi}
            """)
        r, o = ln_addr(t)
        a.e(f"ds_write_b128 v{r}, {vr(xr[t],4)} offset:{o}")
    a.e(f"""
    s_lshl_b32 s39, s30, 5
    v_add_u32 v{vT[0]}, s39, v{vL31}
    v_bfe_u32 v{vT[1]}, v{vL31}, 1, 3
    v_lshlrev_b32 v{vT[0]}, 7, v{vT[0]}
    v_xor_b32 v{vT[2]}, v{vHH}, v{vT[1]}
    """)
    for i in range(4):
        a.e(f"v_xor_b32 v{vT[1]}, {2*i}, v{vT[2]}\nv_lshl_add_u32 v{adr+i}, v{vT[1]}, 4, v{vT[0]}")
    for r in range(1, 3):
        for i in range(4): a.e(f"v_add_u32 v{adr+4*r+i}, {65536*r}, v{adr+i}")
    def fr_addr(t):
        cg = t >> 2
        return adr + 4*(cg >> 2) + (t & 3), (cg & 3) * 16384
    stp.stamp()
    a.e("s_waitcnt lgkmcnt(0)\ns_barrier")
    for t in range(36):
        r, o = fr_addr(t)
        a.e(f"ds_read_b128 {vr(xr[t],4)}, v{r} offset:{o}")
    tmpw = wpre
    a.e(f"""
    v_lshlrev_b32 v{vT[0]}, 4, v{vL}
    v_add_u32 v{vT[0]}, s56, v{vT[0]}
    s_waitcnt lgkmcnt(0)
    s_barrier
    """)
    for i in range(9):
        a.e(f"ds_write_b128 v{vT[0]}, {vr(tmpw+4*i,4)} offset:{1024*i}")
    a.e("s_waitcnt lgkmcnt(0)")
    for i in range(32): a.e(f"v_mov_b32 v{st+i}, 0")
    a.e("s_barrier")
    stp.stamp()
    allp = [prv+r for r in range(16)]
    def pack_items(swap=False):
        L = []
        for q in range(4):
            L.append(f"v_cvt_pk_bf16_f32 v{prv+2*q}, v{prv+4*q}, v{prv+4*q+1}")
            L.append(f"v_cvt_pk_bf16_f32 v{prv+2*q+1}, v{prv+4*q+2}, v{prv+4*q+3}")
        if swap:
            L.append("s_nop 1")
            for p in range(2):
                L.append(f"v_permlane32_swap_b32 v{prv+4*p}, v{prv+4*p+2}\nv_permlane32_swap_b32 v{prv+4*p+1}, v{prv+4*p+3}")
        return L
    def wa_store(stride, base_code):
        L = [f"s_movk_i32 s39, {stride}\nv_lshlrev_b32 v{vO[1]}, 4, v{vHH}\nv_mad_u32_u24 v{vO[0]}, v{vL31}, s39, v{vO[1]}", base_code]
        return L, [f"buffer_store_dwordx4 {vr(prv+4*p,4)}, v{vO[0]}, s[24:27], s61 offen offset:{p*32}" for p in range(2)]
    def epi(ty):
        if ty == "none": return [], []
        if ty == "Z1":
            pre, sts = wa_store(4608, f"s_mul_i32 s61, s36, 4608\ns_sub_u32 s40, s60, 20\ns_lshl_b32 s40, s40, 6\ns_add_u32 s61, s61, s40\ns_add_u32 s61, s61, {WS_Z1}")
            return pre + gelu_items(allp, vT[0:4], 44, vK0) + pack_items(True), sts
        if ty == "Q":
            pre, sts = wa_store(1152, f"s_mul_i32 s61, s36, 1152\ns_lshl_b32 s40, s60, 6\ns_add_u32 s61, s61, s40\ns_add_u32 s61, s61, {WS_Q}")
            return pre + [f"v_mul_f32 v{x}, 0x{f2u(DH ** -0.5 * math.log2(math.e)):08x}, v{x}" for x in allp] + pack_items(True), sts
        if ty == "K":
            pre = [f"""v_lshlrev_b32 v{vO[1]}, 3, v{vHH}
            v_lshl_add_u32 v{vO[0]}, v{vL31}, 5, v{vO[1]}
            v_lshlrev_b32 v{vO[1]}, 2, v{vL31}
            s_lshr_b32 s61, s36, 5
            s_mul_i32 s61, s61, 2304
            s_add_u32 s61, s61, {WS_KV}"""]
            sts = [f"buffer_store_dwordx2 {vr(prv+2*q,2)}, v{vO[0]}, s[24:27], s61 offen offset:{q*16}" for q in range(2)]
            sts.append(f"s_mov_b32 exec_hi, 0\nbuffer_store_dword v{prv+4}, v{vO[1]}, s[24:27], s61 offen offset:1024\ns_mov_b64 exec, -1")
            return pre + pack_items(), sts
        if ty == "V":
            pre = [f"""s_movk_i32 s39, 288
            v_mul_u32_u24 v{vO[1]}, s39, v{vHH}
            v_lshl_add_u32 v{vO[0]}, v{vL31}, 4, v{vO[1]}
            s_lshr_b32 s61, s36, 5
            s_mul_i32 s61, s61, 2304
            s_add_u32 s61, s61, {WS_KV+1152}"""]
            sts = [f"""s_mov_b32 exec_lo, 0x3ffff
            s_mov_b32 exec_hi, 0x3ffff
            buffer_store_dwordx4 {vr(prv,4)}, v{vO[0]}, s[24:27], s61 offen
            buffer_store_dwordx4 {vr(prv+4,4)}, v{vO[0]}, s[24:27], s61 offen offset:576
            s_mov_b64 exec, -1"""]
            return pre + pack_items(), sts
        if ty == "Z2":
            pre = [f"""v_lshlrev_b32 v{vO[1]}, 4, v{vHH}
            v_lshl_add_u32 v{vO[0]}, v{vL31}, 12, v{vO[1]}
            s_sub_u32 s40, s60, 92
            s_lshl_b32 s40, s40, 17
            s_lshl_b32 s61, s36, 1
            s_add_u32 s61, s61, s40
            s_add_u32 s61, s61, {WS_Z2T}"""]
            L = pre + gelu_items(allp, vT[0:4], 44, vK0)
            for r in range(16):
                L.append(f"v_add_f32 v{st+r*2}, v{st+r*2}, v{prv+r}")
                L.append(f"v_fma_f32 v{st+r*2+1}, v{prv+r}, v{prv+r}, v{st+r*2+1}")
            sts = [f"buffer_store_dwordx4 {vr(prv+4*p,4)}, v{vO[0]}, s[24:27], s61 offen offset:{p*32}" for p in range(2)]
            return L + pack_items(True), sts
    NST = {"none": 0, "Z1": 2, "Q": 2, "K": 3, "V": 2, "Z2": 2}
    def reads(t):
        for h in range(2):
            a.e(f"ds_read_b64_tr_b16 {vr(Wf[t%NS]+2*h,2)}, v{vWb} offset:{t*1024+h*256}")
    def variant(wa, ty):
        a.dropping = True
        items, sts = epi(ty)
        items = list(items)
        PD = NS - 1
        per = -(-len(items) // 33) if items else 0
        for t in range(PD): reads(t)
        for t in range(36):
            if t + PD <= 35: reads(t+PD)
            ahead = min(35, t + PD) - t
            a.e(f"s_waitcnt lgkmcnt({2*ahead})")
            c = "0" if t == 0 else vr(acc, 16)
            A, B = (vr(Wf[t%NS],4), vr(xr[t],4)) if wa else (vr(xr[t],4), vr(Wf[t%NS],4))
            a.e(f"v_mfma_f32_32x32x16_bf16 {vr(acc,16)}, {A}, {B}, {c}")
            if t % 3 == 1 and t < 27: a.e(dma_item)
            for _ in range(per):
                if items: a.e(items.pop(0))
            if t >= 34 or (not items and t >= 27):
                if sts: a.e(sts.pop(0))
        for x in items: a.e(x)
        for x in sts: a.e(x)
        a.dropping = False
        a.e(f"s_waitcnt vmcnt({NST[ty] + (2 if en else 0)})\ns_branch k1_stepend")
    a.e("s_mov_b32 s35, s29\ns_mov_b32 s60, -1")
    a.label("k1_loop")
    stp.stamp()
    a.e(f"""
    s_cmp_ge_u32 s35, s34
    s_cbranch_scc1 k1_idle
    s_add_u32 s41, s33, s35
    s_and_b32 s39, s35, 3
    s_mul_i32 s39, s39, {BUF}
    v_add_u32 v{vWb}, s39, v{vW}
    s_add_u32 s52, s35, 2
    s_add_u32 s53, s33, s52
    """)
    dma_setup(53, 52)
    a.e(f"""
    s_cmp_eq_u32 s41, 19
    s_cbranch_scc1 k1_xa
    s_cmp_ge_u32 s41, 92
    s_cbranch_scc1 k1_xa
    s_cmp_eq_u32 s60, -1
    s_cbranch_scc1 k1_wa_none
    s_cmp_lt_u32 s60, 18
    s_cbranch_scc1 k1_wa_Q
    s_cmp_eq_u32 s60, 18
    s_cbranch_scc1 k1_wa_K
    s_cmp_eq_u32 s60, 19
    s_cbranch_scc1 k1_wa_V
    """)
    variant(True, "Z1")
    for ty in ("none", "Q", "K", "V"):
        a.label(f"k1_wa_{ty}")
        variant(True, ty)
    a.label("k1_xa")
    a.e(f"""
    s_cmp_eq_u32 s60, -1
    s_cbranch_scc1 k1_xa_none
    s_cmp_lt_u32 s60, 18
    s_cbranch_scc1 k1_xa_Q
    s_cmp_lt_u32 s60, 92
    s_cbranch_scc1 k1_xa_Z1
    """)
    variant(False, "Z2")
    for ty in ("none", "Q", "Z1"):
        a.label(f"k1_xa_{ty}")
        variant(False, ty)
    a.label("k1_stepend")
    a.e("s_nop 7\ns_nop 3")
    for i in range(16): a.e(f"v_mov_b32 v{prv+i}, v{acc+i}")
    a.e(f"""
    s_mov_b32 s60, s41
    s_add_u32 s35, s35, 2
    s_sub_u32 s39, s35, s29
    s_cmp_ge_u32 s39, s34
    s_cbranch_scc1 k1_idle
    s_barrier
    s_branch k1_loop
    """)
    a.label("k1_idle")
    a.e(f"""
    s_cmp_lt_u32 s60, 18
    s_cbranch_scc1 k1_fin_Q
    s_cmp_lt_u32 s60, 92
    s_cbranch_scc1 k1_fin_Z1
    """)
    for ty in ("Z2", "Q", "Z1"):
        if ty != "Z2": a.label(f"k1_fin_{ty}")
        items, sts = epi(ty)
        for x in items + sts: a.e(x)
        a.e("s_branch k1_fin")
    a.label("k1_fin")
    stp.stamp()
    a.e(f"s_cmp_lt_u32 s32, 8\ns_cbranch_scc1 {END}")
    for sh in (8, 4, 2, 1):
        for i in range(32):
            a.e(f"v_add_f32_dpp v{st+i}, v{st+i}, v{st+i} row_ror:{sh} row_mask:0xf bank_mask:0xf")
        a.e("s_nop 1")
    for i in range(32):
        a.e(f"ds_swizzle_b32 v{xr[0]+i}, v{st+i} offset:0x401F")
    a.e("s_waitcnt lgkmcnt(0)")
    for i in range(32):
        a.e(f"v_add_f32 v{st+i}, v{st+i}, v{xr[0]+i}")
    a.e(f"""
    v_lshlrev_b32 v{vO[0]}, 5, v{vHH}
    s_sub_u32 s39, s32, 8
    s_lshl_b32 s39, s39, 1
    s_add_u32 s39, s39, s29
    s_lshl_b32 s39, s39, 14
    s_lshl_b32 s40, s36, 3
    s_add_u32 s39, s39, s40
    s_add_u32 s39, s39, {WS_STAT}
    v_cmp_eq_u32 vcc, 0, v{vL31}
    s_and_saveexec_b64 s[54:55], vcc
    """)
    for q in range(4):
        a.e(f"buffer_store_dwordx4 {vr(st+q*8,4)}, v{vO[0]}, s[24:27], s39 offen offset:{q*64}")
        a.e(f"buffer_store_dwordx4 {vr(st+q*8+4,4)}, v{vO[0]}, s[24:27], s39 offen offset:{q*64+16}")
    a.label(END)
    a.e("s_endpgm")
    a.end_kernel(name, nv)
    print("k1 vgprs", nv)
    for p in range(256): assert (p*10923)>>16 == p//6
```

```python
from asmlib import *
from layout import *
import os

def gen_k4(a):
    name = "k4_kernel"
    STG = 20480; WOFF = 8192
    NSLOT = 6
    NSTG = 45
    a.begin_kernel(name, 192, 256, NSLOT*STG)
    va = VAlloc(1)
    vL = va.get(); vL15 = va.get(); vG = va.get()
    vT0 = va.get(8, 4); vT = [vT0+i for i in range(8)]
    vDA = [va.get(), va.get()]
    vDW = [va.get(), va.get(), va.get()]
    vA = [[va.get() for p in range(2)] for h in range(2)]
    vW = [va.get(), va.get()]
    vX = va.get();
    acc = [[va.get(4, 4) for j in range(2)] for i in range(3)]
    fa = [[[va.get(4, 4) for j in range(2)] for k in range(2)] for s in range(2)]
    fw = [[[va.get(4, 4) for i in range(3)] for k in range(2)] for s in range(2)]
    xr = [[va.get(2, 2) for j in range(2)] for i in range(3)]
    nv = va.n
    END = "k4_end"
    a.e(f"""
    s_cmp_ge_u32 s2, 192
    s_cbranch_scc1 {END}
    s_load_dwordx2 s[4:5], s[0:1], 0
    s_load_dwordx2 s[6:7], s[0:1], 32
    s_load_dwordx4 s[8:11], s[0:1], 72
    s_load_dwordx2 s[14:15], s[0:1], 96
    v_lshrrev_b32 v{vT[0]}, 6, v0
    v_and_b32 v{vL}, 63, v0
    s_nop 0
    v_readfirstlane_b32 s28, v{vT[0]}
    v_and_b32 v{vL15}, 15, v{vL}
    v_lshrrev_b32 v{vG}, 4, v{vL}
    s_and_b32 s29, s28, 1
    s_lshr_b32 s30, s28, 1
    """)
    a.e(f"""
    s_and_b32 s39, s2, 7
    s_lshr_b32 s40, s2, 3
    s_lshl_b32 s39, s39, 2
    s_and_b32 s41, s40, 3
    s_add_u32 s31, s39, s41
    s_lshr_b32 s32, s40, 2
    s_lshl_b32 s33, s31, 6
    s_mul_i32 s34, s32, 96
    """)
    a.e(f"""
    v_lshrrev_b32 v{vT[0]}, 3, v{vL}
    v_and_b32 v{vT[1]}, 7, v{vL}
    v_lshrrev_b32 v{vT[2]}, 1, v{vT[0]}
    v_xor_b32 v{vT[1]}, v{vT[1]}, v{vT[2]}
    v_mul_u32_u24 v{vT[0]}, 5760, v{vT[0]}
    v_lshl_add_u32 v{vDA[0]}, v{vT[1]}, 4, v{vT[0]}
    v_xor_b32 v{vT[1]}, 4, v{vT[1]}
    v_lshl_add_u32 v{vDA[1]}, v{vT[1]}, 4, v{vT[0]}
    """)
    for i in range(3):
        a.e(f"""
        v_add_u32 v{vT[0]}, {64*i}, v{vL}
        v_mul_u32_u24 v{vT[1]}, 5462, v{vT[0]}
        v_lshrrev_b32 v{vT[1]}, 16, v{vT[1]}
        v_mul_u32_u24 v{vT[2]}, 12, v{vT[1]}
        v_sub_u32 v{vT[2]}, v{vT[0]}, v{vT[2]}
        v_bfe_u32 v{vT[3]}, v{vT[1]}, 3, 1
        v_lshlrev_b32 v{vT[3]}, 1, v{vT[3]}
        v_xor_b32 v{vT[2]}, v{vT[2]}, v{vT[3]}
        v_mul_u32_u24 v{vT[1]}, 1152, v{vT[1]}
        v_lshl_add_u32 v{vDW[i]}, v{vT[2]}, 4, v{vT[1]}
        """)
    a.e(f"""
    v_bfe_u32 v{vT[1]}, v{vL15}, 1, 3
    v_xor_b32 v{vT[0]}, v{vG}, v{vT[1]}
    s_lshl_b32 s39, s29, 5
    v_add_u32 v{vT[2]}, s39, v{vL15}
    v_lshlrev_b32 v{vT[2]}, 7, v{vT[2]}
    v_lshl_add_u32 v{vA[0][0]}, v{vT[0]}, 4, v{vT[2]}
    v_xor_b32 v{vT[0]}, 4, v{vT[0]}
    v_lshl_add_u32 v{vA[0][1]}, v{vT[0]}, 4, v{vT[2]}
    v_add_u32 v{vA[1][0]}, {3*STG}, v{vA[0][0]}
    v_add_u32 v{vA[1][1]}, {3*STG}, v{vA[0][1]}
    """)
    vWi = [[va.get() for i in range(3)] for h in range(2)]
    vst = va.get(2)
    stp = Stamps(a, bool(os.environ.get('STAMPS4')), 24, vst, wg=int(os.environ.get('STWG','0')))
    nv = va.n
    a.e(f"""
    v_bfe_u32 v{vT[0]}, v{vL}, 2, 2
    v_lshl_add_u32 v{vT[0]}, v{vG}, 3, v{vT[0]}
    v_mul_u32_u24 v{vT[0]}, 192, v{vT[0]}
    v_and_b32 v{vT[1]}, 3, v{vL}
    v_lshl_add_u32 v{vT[0]}, v{vT[1]}, 3, v{vT[0]}
    v_add_u32 v{vT[0]}, {WOFF}, v{vT[0]}
    v_and_b32 v{vT[1]}, 1, v{vG}
    s_mul_i32 s39, s30, 3
    """)
    for i in range(3):
        a.e(f"""
        s_add_u32 s40, s39, {i}
        v_xor_b32 v{vT[2]}, s40, v{vT[1]}
        v_lshl_add_u32 v{vWi[0][i]}, v{vT[2]}, 5, v{vT[0]}
        v_add_u32 v{vWi[1][i]}, {3*STG}, v{vWi[0][i]}
        """)
    a.e(f"""
    s_waitcnt lgkmcnt(0)
    s_mov_b32 s16, s4
    s_mov_b32 s17, s5
    s_mov_b32 s18, {S*D*2}
    s_mov_b32 s19, 0x00020000
    s_mov_b32 s20, s6
    s_mov_b32 s21, s7
    s_mov_b32 s22, {D*D*2}
    s_mov_b32 s23, 0x00020000
    s_mov_b32 s24, s14
    s_mov_b32 s25, s15
    s_mov_b32 s26, 0x10000000
    s_mov_b32 s27, 0x00020000
    s_mov_b32 s52, s8
    s_mov_b32 s53, s9
    s_mov_b32 s54, {FH*D*2}
    s_mov_b32 s55, 0x00020000
    s_mov_b32 s56, s10
    s_mov_b32 s57, s11
    s_mov_b32 s58, {S*D*2}
    s_mov_b32 s59, 0x00020000
    """)
    a.e(f"""
    s_lshl_b32 s39, s28, 4
    s_add_u32 s40, s33, s39
    s_mul_i32 s44, s40, 5760
    s_add_u32 s44, s44, {WS_OH}
    s_mul_i32 s46, s39, 1152
    s_lshl_b32 s40, s34, 1
    s_add_u32 s46, s46, s40
    s_lshl_b32 s47, s28, 11
    s_mul_i32 s49, s28, 3072
    s_add_u32 s49, s49, {WOFF}
    """)
    def dma(stage):
        sl = (stage % NSLOT) * STG
        k = stage * 128
        if stage < 9: srd, kw = "s[20:23]", stage*64*1152
        else: srd, kw = "s[52:55]", (stage-9)*64*1152
        a.e(f"""
        s_add_u32 m0, s47, {sl}
        s_add_u32 s50, s44, {k}
        buffer_load_dwordx4 v{vDA[0]}, s[24:27], s50 offen lds
        s_add_u32 m0, s47, {sl+1024}
        s_add_u32 s50, s44, {k+8*5760}
        buffer_load_dwordx4 v{vDA[1]}, s[24:27], s50 offen lds
        s_add_u32 s50, s46, {kw}
        """)
        for i in range(3):
            a.e(f"""
            s_add_u32 m0, s49, {sl+1024*i}
            s_nop 0
            buffer_load_dwordx4 v{vDW[i]}, {srd}, s50 offen lds
            """)
    def reads(stage):
        st = stage & 1
        sl = stage % NSLOT
        hb = sl // 3; off = (sl % 3) * STG
        for kk in range(2):
            for j in range(2):
                a.e(f"ds_read_b128 {vr(fa[st][kk][j],4)}, v{vA[hb][kk]} offset:{off + j*2048}")
            for i in range(3):
                for h in range(2):
                    a.e(f"ds_read_b64_tr_b16 {vr(fw[st][kk][i]+2*h,2)}, v{vWi[hb][i]} offset:{off + (32*kk+4*h)*192}")
    PF = NSLOT - 1
    stp.init(28, WS_END)
    stp.stamp()
    for s_ in range(PF): dma(s_)
    a.e(f"s_waitcnt vmcnt({5*(PF-1)})\ns_barrier")
    reads(0)
    for i in range(NSTG):
        if i + 1 < NSTG:
            inflight_after = min(NSTG - 1, i + PF - 1) - (i + 1)
            a.e(f"s_waitcnt vmcnt({5*inflight_after}) lgkmcnt(0)\ns_barrier")
            reads(i+1)
            if i + PF < NSTG: dma(i+PF)
        else:
            a.e("s_waitcnt lgkmcnt(0)")
        if i % 5 == 0: stp.stamp()
        st = i & 1
        for kk in range(2):
            for ii in range(3):
                for j in range(2):
                    c = "0" if (i == 0 and kk == 0) else vr(acc[ii][j], 4)
                    a.e(f"v_mfma_f32_16x16x32_bf16 {vr(acc[ii][j],4)}, {vr(fw[st][kk][ii],4)}, {vr(fa[st][kk][j],4)}, {c}")
    a.e(f"""
    s_lshl_b32 s39, s29, 5
    s_add_u32 s39, s39, s33
    v_add_u32 v{vT[0]}, s39, v{vL15}
    v_lshlrev_b32 v{vT[1]}, 3, v{vG}
    s_movk_i32 s40, 1152
    v_mad_u32_u24 v{vX}, v{vT[0]}, s40, v{vT[1]}
    v_add_u32 v{vT[2]}, {16*1152}, v{vX}
    s_mul_i32 s41, s30, 96
    s_lshl_b32 s42, s34, 1
    s_add_u32 s42, s42, s41
    """)
    for ii in range(3):
        for j in range(2):
            a.e(f"buffer_load_dwordx2 {vr(xr[ii][j],2)}, v{vX if j==0 else vT[2]}, s[16:19], s42 offen offset:{ii*32}")
    a.e("s_waitcnt vmcnt(0)\ns_nop 4")
    for ii in range(3):
        for j in range(2):
            ac = acc[ii][j]; z = xr[ii][j]
            a.e(f"""
            v_lshlrev_b32 v{vT[4]}, 16, v{z}
            v_and_b32 v{vT[5]}, 0xffff0000, v{z}
            v_lshlrev_b32 v{vT[6]}, 16, v{z+1}
            v_and_b32 v{vT[7]}, 0xffff0000, v{z+1}
            """)
            for r in range(4): a.e(f"v_add_f32 v{ac+r}, v{ac+r}, v{vT[4+r]}")
            a.e(f"""
            v_cvt_pk_bf16_f32 v{ac}, v{ac}, v{ac+1}
            v_cvt_pk_bf16_f32 v{ac+1}, v{ac+2}, v{ac+3}
            buffer_store_dwordx2 {vr(ac,2)}, v{vX if j==0 else vT[2]}, s[56:59], s42 offen offset:{ii*32}
            """)
    stp.stamp()
    a.label(END)
    a.e("s_endpgm")
    a.end_kernel(name, nv)
    print("k4 vgprs", nv)
    for p in range(192): assert (p*5462)>>16 == p//12
```

```python
from asmlib import *
from layout import *
import math, os

def gen_kf(a):
    name = "kf_kernel"
    STG = 34816; BOFF = 18432; NSTG = 32
    KVB = 2304; KVP = 4608
    KVL = 4*STG
    a.begin_kernel(name, 256, 768, KVL + 4*KVP)
    END = "kf_end"
    a.e(f"""
    s_cmp_ge_u32 s2, 256
    s_cbranch_scc1 {END}
    s_load_dwordx4 s[4:7], s[0:1], 56
    s_load_dwordx2 s[14:15], s[0:1], 96
    s_load_dwordx2 s[8:9], s[0:1], 32
    s_load_dwordx2 s[10:11], s[0:1], 72
    v_lshrrev_b32 v1, 6, v0
    s_nop 0
    v_readfirstlane_b32 s28, v1
    s_waitcnt lgkmcnt(0)
    s_mov_b32 s24, s14
    s_mov_b32 s25, s15
    s_mov_b32 s26, 0x10000000
    s_mov_b32 s27, 0x00020000
    s_cmp_ge_u32 s28, 8
    s_cbranch_scc1 kf_gemm
    """)
    va = VAlloc(1)
    vL = va.get(); vL31 = va.get(); vHH = va.get()
    vT0 = va.get(4, 4); vT = [vT0+i for i in range(4)]
    vKa = va.get(); vK2a = va.get(); vVa = va.get(); vMx = va.get(); vAl = va.get(); vKV = va.get()
    qf0 = va.get(4, 4); qf1 = va.get(4, 4)
    Sb = [[va.get(16, 4) for b in range(2)] for g in range(2)]
    P = va.get(16, 4)
    O = va.get(16, 4)
    Cn = va.get(16, 4)
    kf0 = [va.get(4, 4) for b in range(2)]
    kf1 = [va.get(4, 4) for b in range(2)]
    vf = [[va.get(4, 4) for m in range(2)] for b in range(2)]
    stp = Stamps(a, bool(os.environ.get('STAMPSF')), 24, vT[2], wg=int(os.environ.get('STWG','0')))
    nvA = va.n
    a.e(f"""
    v_and_b32 v{vL}, 63, v0
    v_and_b32 v{vL31}, 31, v{vL}
    v_lshrrev_b32 v{vHH}, 5, v{vL}
    s_and_b32 s30, s2, 3
    s_lshl_b32 s30, s30, 3
    s_add_u32 s30, s30, s28
    s_lshr_b32 s31, s2, 2
    s_lshl_b32 s31, s31, 5
    s_mul_i32 s39, s31, 1152
    s_mul_i32 s40, s30, 36
    s_add_u32 s39, s39, s40
    s_add_u32 s39, s39, {WS_Q}
    s_movk_i32 s40, 1152
    v_lshlrev_b32 v{vT[1]}, 4, v{vHH}
    v_mad_u32_u24 v{vT[1]}, v{vL31}, s40, v{vT[1]}
    v_mul_u32_u24 v{vT[0]}, s40, v{vL31}
    s_mov_b32 s46, -1
    s_mov_b32 s47, 0
    s_mov_b32 s48, 0x3ffff
    s_mov_b32 s49, 0x3ffff
    buffer_load_dwordx4 {vr(qf0,4)}, v{vT[1]}, s[24:27], s39 offen
    buffer_load_dword v{qf1}, v{vT[0]}, s[24:27], s39 offen offset:32
    """)
    stp.init(28, WS_END)
    stp.stamp()
    a.e(f"""
    v_lshlrev_b32 v{vKV}, 4, v{vL}
    s_lshl_b32 s43, s28, 10
    s_add_u32 s42, s43, {WS_KV}
    s_add_u32 s43, s43, {KVL}
    s_mov_b32 s54, -1
    s_cmp_lt_u32 s28, 4
    s_cselect_b32 s55, -1, 0
    """)
    def kvdma(n):
        L = a.newlabel("kfkv")
        sl = (n & 3) * KVP
        a.e(f"""
        s_cmp_ge_u32 s28, 5
        s_cbranch_scc1 {L}
        s_add_u32 m0, s43, {sl}
        s_mov_b64 exec, s[54:55]
        buffer_load_dwordx4 v{vKV}, s[24:27], s42 offen lds
        s_mov_b64 exec, -1
        s_add_u32 s42, s42, {KVP}
        {L}:
        """)
    for n in range(3): kvdma(n)
    a.e(f"""
    v_lshlrev_b32 v{vKa}, 4, v{vHH}
    v_lshl_add_u32 v{vKa}, v{vL31}, 5, v{vKa}
    v_add_u32 v{vKa}, {KVL}, v{vKa}
    v_lshlrev_b32 v{vK2a}, 2, v{vL31}
    v_add_u32 v{vK2a}, {KVL}, v{vK2a}
    s_movk_i32 s39, 288
    v_mul_u32_u24 v{vVa}, s39, v{vHH}
    v_lshl_add_u32 v{vVa}, v{vL31}, 4, v{vVa}
    v_add_u32 v{vVa}, {KVL}, v{vVa}
    s_mov_b32 s50, 0xff800000
    s_mov_b32 s51, 0xff800000
    s_mov_b32 s52, 0x07060302
    v_cmp_eq_u32 vcc, 18, v{vL31}
    v_mov_b32 v{vT[0]}, 0x3f803f80
    """)
    for i in range(1, 4): a.e(f"v_mov_b32 v{qf1+i}, 0")
    for b in range(2):
        for i in range(4): a.e(f"v_mov_b32 v{kf1[b]+i}, 0")
        for m in range(2):
            for i in range(4): a.e(f"v_cndmask_b32 v{vf[b][m]+i}, 0, v{vT[0]}, vcc")
    for i in range(16):
        a.e(f"v_mov_b32 v{P+i}, 0\nv_mov_b32 v{O+i}, 0\nv_mov_b32 v{Cn+i}, 0")
    def k_read_list(off):
        L = []
        for b in range(2):
            L.append(f"ds_read_b128 {vr(kf0[b],4)}, v{vKa} offset:{off + b*KVB}")
        L.append("s_mov_b64 exec, s[46:47]")
        for b in range(2):
            L.append(f"ds_read_b32 v{kf1[b]}, v{vK2a} offset:{off + b*KVB + 1024}")
        L.append("s_mov_b64 exec, -1")
        return "\n".join(L)
    def v_read_blk(off, b):
        L = ["s_mov_b64 exec, s[48:49]"]
        for m in range(2):
            L.append(f"ds_read_b128 {vr(vf[b][m],4)}, v{vVa} offset:{off + b*KVB + 1152 + m*576}")
        L.append("s_mov_b64 exec, -1")
        return "\n".join(L)
    def pv(b, m):
        return f"v_mfma_f32_32x32x16_bf16 {vr(O,16)}, {vr(vf[b][m],4)}, {vr(P+8*b+4*m,4)}, {vr(O,16)}"
    def qk1(g, b, half):
        if half == 0:
            return f"v_mfma_f32_32x32x16_bf16 {vr(Sb[g][b],16)}, {vr(kf0[b],4)}, {vr(qf0,4)}, {vr(Cn,16)}"
        return f"v_mfma_f32_32x32x16_bf16 {vr(Sb[g][b],16)}, {vr(kf1[b],4)}, {vr(qf1,4)}, {vr(Sb[g][b],16)}"
    rare = []
    def pk(d, lo, hi):
        if os.environ.get("PERM"): return f"v_perm_b32 v{d}, v{hi}, v{lo}, s52"
        return f"v_cvt_pk_bf16_f32 v{d}, v{lo}, v{hi}"
    def step(u):
        par = u & 1
        cur = u * KVP; nx2 = ((u + 2) & 3) * KVP
        sv = [Sb[par][b]+r for b in range(2) for r in range(16)]
        mx = [f"v_max3_f32 v{vMx}, v{sv[0]}, v{sv[1]}, v{sv[2]}", f"v_max3_f32 v{vT[0]}, v{sv[3]}, v{sv[4]}, v{sv[5]}"]
        i = 6; tog = 0
        while i + 1 < 32:
            d = vMx if tog == 0 else vT[0]
            mx.append(f"v_max3_f32 v{d}, v{d}, v{sv[i]}, v{sv[i+1]}")
            i += 2; tog ^= 1
        a.e(pv(1, 0))
        a.e(v_read_blk(cur, 0))
        for x in mx[:7]: a.e(x)
        a.e(pv(1, 1))
        for x in mx[7:]: a.e(x)
        Lr = a.newlabel("kfrare"); Lb = a.newlabel("kfback")
        a.e(f"""
        v_max_f32 v{vMx}, v{vMx}, v{vT[0]}
        v_cmp_lt_f32 vcc, s50, v{vMx}
        s_nop 0
        s_cbranch_vccnz {Lr}
        {Lb}:
        """)
        rare.append((Lr, Lb, sv))
        a.e(qk1(par^1, 0, 0))
        a.e(v_read_blk(cur, 1))
        for x in sv[0:6]: a.e(f"v_exp_f32 v{x}, v{x}")
        a.e(qk1(par^1, 1, 0))
        for x in sv[6:12]: a.e(f"v_exp_f32 v{x}, v{x}")
        a.e(qk1(par^1, 0, 1))
        for x in sv[12:18]: a.e(f"v_exp_f32 v{x}, v{x}")
        a.e(qk1(par^1, 1, 1))
        for i in range(8): a.e(pk(P+i, sv[2*i], sv[2*i+1]))
        a.e("s_waitcnt lgkmcnt(2)\ns_nop 0")
        a.e(pv(0, 0))
        for x in sv[18:24]: a.e(f"v_exp_f32 v{x}, v{x}")
        a.e(k_read_list(nx2))
        a.e(pv(0, 1))
        for x in sv[24:32]: a.e(f"v_exp_f32 v{x}, v{x}")
        a.e("s_nop 0")
        for i in range(8, 16): a.e(pk(P+i, sv[2*i], sv[2*i+1]))
    a.e(f"s_waitcnt vmcnt(0)\ns_barrier")
    a.e(f"v_cmp_gt_u32 vcc, 32, v{vL}\ns_nop 1\nv_cndmask_b32 v{qf1}, 0, v{qf1}, vcc")
    a.e(k_read_list(0))
    a.e("s_waitcnt lgkmcnt(0)\ns_nop 0")
    for b in range(2): a.e(qk1(0, b, 0))
    for b in range(2): a.e(qk1(0, b, 1))
    a.e(k_read_list(KVP))
    a.e(f"""
    s_cmp_lt_u32 s28, 6
    s_cbranch_scc1 kf_nopf
    s_mov_b32 s56, s8
    s_mov_b32 s57, s9
    s_mov_b32 s58, {D*D*2}
    s_mov_b32 s59, 0x00020000
    s_mov_b32 s60, s10
    s_mov_b32 s61, s11
    s_mov_b32 s62, {FH*D*2}
    s_mov_b32 s63, 0x00020000
    s_lshl_b32 s39, s2, 7
    v_and_b32 v{vT[1]}, 127, v0
    v_add_u32 v{vT[1]}, s39, v{vT[1]}
    v_lshlrev_b32 v{vT[1]}, 7, v{vT[1]}
    buffer_load_dword v{vKV}, v{vT[1]}, s[56:59], 0 offen
    buffer_load_dword v{vKV}, v{vT[1]}, s[60:63], 0 offen
    kf_nopf:
    s_waitcnt lgkmcnt(0)
    s_nop 7
    s_nop 7
    """)
    stp.stamp()
    if os.environ.get("APRIO"): a.e(f"s_setprio {os.environ['APRIO']}")
    a.e("s_mov_b32 s35, 0")
    a.label("kf_aloop")
    for u in range(4):
        L = a.newlabel("kfsk")
        a.e(f"s_cmp_ge_u32 s35, {29-u}\ns_cbranch_scc1 {L}")
        kvdma(u + 3)
        a.label(L)
        if not os.environ.get("KF_NOA"): step(u)
        if u == 3:
            a.e(f"""
            s_add_u32 s35, s35, 4
            s_cmp_ge_u32 s35, 32
            s_cbranch_scc1 kf_adone
            """)
        L = a.newlabel("kfw")
        a.e(f"s_cmp_ge_u32 s28, 5\ns_cbranch_scc1 {L}\ns_waitcnt vmcnt(0)\n{L}:\ns_waitcnt lgkmcnt(0)\ns_barrier")
    stp.stamp()
    a.e("s_branch kf_aloop")
    a.label("kf_adone")
    a.e("s_waitcnt lgkmcnt(0)\ns_nop 1")
    a.e(pv(1, 0)); a.e(pv(1, 1))
    a.e("s_nop 7\ns_nop 7")
    stp.stamp()
    a.e(f"""
    v_mov_b32 v{vT[0]}, v{O+10}
    v_mov_b32 v{vT[1]}, v{O+10}
    s_nop 1
    v_permlane32_swap_b32 v{vT[1]}, v{vT[0]}
    v_cmp_gt_u32 vcc, 32, v{vL}
    s_nop 1
    v_cndmask_b32 v{vT[0]}, v{vT[1]}, v{O+10}, vcc
    v_rcp_f32 v{vT[0]}, v{vT[0]}
    s_nop 0
    """)
    for r in range(10): a.e(f"v_mul_f32 v{O+r}, v{O+r}, v{vT[0]}")
    for i in range(5): a.e(f"v_cvt_pk_bf16_f32 v{P+i}, v{O+2*i}, v{O+2*i+1}")
    a.e(f"""
    s_movk_i32 s40, 5760
    v_lshlrev_b32 v{vT[1]}, 3, v{vHH}
    v_mad_u32_u24 v{vT[1]}, v{vL31}, s40, v{vT[1]}
    s_mul_i32 s39, s31, 5760
    s_mul_i32 s40, s30, 36
    s_add_u32 s39, s39, s40
    s_add_u32 s39, s39, {WS_OH}
    buffer_store_dwordx2 {vr(P,2)}, v{vT[1]}, s[24:27], s39 offen
    buffer_store_dwordx2 {vr(P+2,2)}, v{vT[1]}, s[24:27], s39 offen offset:16
    s_mov_b64 exec, s[46:47]
    buffer_store_dword v{P+4}, v{vT[1]}, s[24:27], s39 offen offset:32
    s_mov_b64 exec, -1
    s_branch kf_coop
    """)
    for (Lr, Lb, sv) in rare:
        a.label(Lr)
        a.e(f"""
        v_mov_b32 v{vT[1]}, v{vMx}
        s_nop 1
        v_permlane32_swap_b32 v{vT[1]}, v{vMx}
        s_nop 1
        v_max_f32 v{vMx}, v{vMx}, v{vT[1]}
        v_max_f32 v{vMx}, s51, v{vMx}
        v_max_f32 v{vAl}, 0, v{vMx}
        v_exp_f32 v{vAl}, -v{vAl}
        s_mov_b32 s50, 0x42700000
        s_mov_b32 s51, 0
        """)
        for x in sv: a.e(f"v_sub_f32 v{x}, v{x}, v{vMx}")
        for r in range(16): a.e(f"v_sub_f32 v{Cn+r}, v{Cn+r}, v{vMx}")
        for r in range(12): a.e(f"v_mul_f32 v{O+r}, v{O+r}, v{vAl}")
        a.e(f"s_nop 1\ns_branch {Lb}")
    a.label("kf_gemm")
    if os.environ.get("GPRIO"): a.e(f"s_setprio {os.environ['GPRIO']}")
    va = VAlloc(2)
    vL = va.get(); vL15 = va.get(); vG = va.get(); vL31 = va.get(); vHH = va.get()
    vT0 = va.get(8, 4); vT = [vT0+i for i in range(8)]
    vD = [va.get(), va.get(), va.get()]
    ad0 = va.get(12)
    vA32 = [ad0+i for i in range(4)]; vB32 = [ad0+4+i for i in range(4)]; vA16 = [ad0+8, ad0+9]; vB16 = [ad0+10, ad0+11]
    vBs = [va.get(), va.get(), va.get()]
    acc32 = [va.get(16, 4) for i in range(4)]
    acc16 = [va.get(4, 4) for j in range(2)]
    fa32 = [va.get(4, 4) for i in range(4)]
    fb32 = [va.get(4, 4) for p in range(2)]
    fa16 = va.get(4, 4)
    fb16 = [va.get(4, 4) for j in range(2)]
    stp = Stamps(a, bool(os.environ.get('STAMPSF')), 24, vT[6], wg=int(os.environ.get('STWG','0')))
    nvG = va.n
    a.e(f"""
    v_and_b32 v{vL}, 63, v0
    v_and_b32 v{vL15}, 15, v{vL}
    v_lshrrev_b32 v{vG}, 4, v{vL}
    v_and_b32 v{vL31}, 31, v{vL}
    v_lshrrev_b32 v{vHH}, 5, v{vL}
    s_and_b32 s29, s28, 3
    s_and_b32 s39, s2, 7
    s_lshr_b32 s40, s2, 3
    s_and_b32 s41, s39, 3
    s_lshl_b32 s41, s41, 2
    s_and_b32 s42, s40, 3
    s_add_u32 s31, s41, s42
    s_lshr_b32 s41, s39, 2
    s_lshl_b32 s41, s41, 3
    s_lshr_b32 s42, s40, 2
    s_add_u32 s32, s41, s42
    s_mul_i32 s33, s31, 144
    s_lshl_b32 s34, s32, 7
    v_lshrrev_b32 v{vT[0]}, 3, v{vL}
    v_and_b32 v{vT[1]}, 7, v{vL}
    v_lshrrev_b32 v{vT[2]}, 1, v{vT[0]}
    v_xor_b32 v{vT[1]}, v{vT[1]}, v{vT[2]}
    v_lshlrev_b32 v{vT[0]}, 12, v{vT[0]}
    v_lshl_add_u32 v{vD[0]}, v{vT[1]}, 4, v{vT[0]}
    v_xor_b32 v{vD[1]}, 64, v{vD[0]}
    s_and_b32 s39, s29, 1
    s_lshl_b32 s39, s39, 6
    v_xor_b32 v{vD[2]}, s39, v{vD[0]}
    s_lshl_b32 s39, s29, 12
    s_add_u32 s39, s39, {BOFF}
    v_bfe_u32 v{vT[1]}, v{vL15}, 1, 3
    v_xor_b32 v{vT[0]}, v{vG}, v{vT[1]}
    v_lshlrev_b32 v{vT[0]}, 4, v{vT[0]}
    v_lshl_add_u32 v{vT[0]}, v{vL15}, 7, v{vT[0]}
    v_add_u32 v{vA16[0]}, {128*128}, v{vT[0]}
    v_xor_b32 v{vA16[1]}, 64, v{vA16[0]}
    v_add_u32 v{vB16[0]}, s39, v{vT[0]}
    v_xor_b32 v{vB16[1]}, 64, v{vB16[0]}
    v_bfe_u32 v{vT[1]}, v{vL31}, 1, 3
    v_xor_b32 v{vT[0]}, v{vHH}, v{vT[1]}
    v_lshlrev_b32 v{vT[0]}, 4, v{vT[0]}
    v_lshl_add_u32 v{vA32[0]}, v{vL31}, 7, v{vT[0]}
    """)
    for q in range(1, 4): a.e(f"v_xor_b32 v{vA32[q]}, {32*q}, v{vA32[0]}")
    for q in range(4): a.e(f"v_add_u32 v{vB32[q]}, s39, v{vA32[q]}")
    a.e(f"""
    s_mov_b32 s16, s4
    s_mov_b32 s17, s5
    s_mov_b32 s18, {S*S*2}
    s_mov_b32 s19, 0x00020000
    s_mov_b32 s20, s6
    s_mov_b32 s21, s7
    s_mov_b32 s22, {S*2}
    s_mov_b32 s23, 0x00020000
    s_lshl_b32 s39, s29, 5
    s_add_u32 s40, s33, s39
    s_lshl_b32 s44, s40, 12
    s_add_u32 s44, s44, {WS_Z2N}
    s_lshl_b32 s41, s29, 3
    s_add_u32 s41, s41, 128
    s_add_u32 s41, s41, s33
    s_lshl_b32 s45, s41, 12
    s_add_u32 s45, s45, {WS_Z2N}
    s_add_u32 s40, s34, s39
    s_lshl_b32 s46, s40, 12
    s_lshl_b32 s47, s29, 12
    s_lshl_b32 s48, s29, 10
    s_add_u32 s48, s48, {16*1024}
    s_add_u32 s49, s47, {BOFF}
    """)
    stp.init(28, WS_END)
    stp.stamp()
    def dma_list(stage):
        sl = (stage & 3) * STG; k = stage * 128
        L = []
        for q in range(4):
            L.append(f"""
            s_add_u32 m0, s47, {sl+1024*q}
            s_add_u32 s50, s44, {k+8*4096*q}
            buffer_load_dwordx4 v{vD[q&1]}, s[24:27], s50 offen lds
            """)
        for q in range(4):
            L.append(f"""
            s_add_u32 m0, s49, {sl+1024*q}
            s_add_u32 s50, s46, {k+8*4096*q}
            buffer_load_dwordx4 v{vD[q&1]}, s[16:19], s50 offen lds
            """)
        lb = a.newlabel("kfd")
        L.append(f"""
        s_cmp_ge_u32 s29, 2
        s_cbranch_scc1 {lb}
        s_add_u32 m0, s48, {sl}
        s_add_u32 s50, s45, {k}
        buffer_load_dwordx4 v{vD[2]}, s[24:27], s50 offen lds
        {lb}:
        """)
        return L
    trk = {"n": 0, "half": 0}
    ids = {}
    def rd(key, dst, vaddr, stage, off):
        hb = (stage & 3) >> 1
        if hb != trk["half"]:
            d = 2*STG if hb == 1 else -2*STG
            for r in range(12): a.e(f"v_add_u32 v{ad0+r}, {d & 0xffffffff}, v{ad0+r}")
            trk["half"] = hb
        a.e(f"ds_read_b128 {vr(dst,4)}, v{vaddr} offset:{(stage & 1)*STG + off}")
        ids[key] = trk["n"]; trk["n"] += 1
    def need(*keys):
        y = min(trk["n"] - 1 - ids[k] for k in keys)
        a.e(f"s_waitcnt lgkmcnt({min(15, y)})")
    NM = 4*NSTG
    def rdA32(m, i): rd(("a", m, i), fa32[i], vA32[m & 3], m >> 2, i*4096)
    def rdB32(m): rd(("b", m), fb32[m & 1], vB32[m & 3], m >> 2, 0)
    def rd16(n):
        rd(("a16", n), fa16, vA16[n & 1], n >> 1, 0)
        for j in range(2): rd(("b16", n, j), fb16[j], vB16[n & 1], n >> 1, j*2048)
    for s_ in range(3):
        for x in dma_list(s_): a.e(x)
    a.e("s_waitcnt vmcnt(8)\ns_barrier")
    rdB32(0)
    for i in range(4): rdA32(0, i)
    rd16(0)
    a.dropping = True
    hooks = []
    for m in range(NM):
        stage, q = m >> 2, m & 3
        if q == 0:
            hooks = dma_list(stage+3) if stage + 3 < NSTG else []
            if stage == NSTG - 3:
                a.e(f"""
                s_lshl_b32 s39, s29, 5
                s_add_u32 s39, s39, s34
                v_add_u32 v{vT[0]}, s39, v{vL15}
                v_lshlrev_b32 v{vT[0]}, 1, v{vT[0]}
                v_add_u32 v{vT[1]}, s39, v{vL31}
                v_lshlrev_b32 v{vT[1]}, 1, v{vT[1]}
                buffer_load_ushort v{vBs[0]}, v{vT[0]}, s[20:23], 0 offen
                buffer_load_ushort v{vBs[1]}, v{vT[0]}, s[20:23], 0 offen offset:32
                buffer_load_ushort v{vBs[2]}, v{vT[1]}, s[20:23], 0 offen
                """)
        last = (m == NM - 1)
        if q & 1:
            n = m >> 1
            need(("a16", n), ("b16", n, 0), ("b16", n, 1))
            for j in range(2):
                c = "0" if n == 0 else vr(acc16[j], 4)
                a.e(f"v_mfma_f32_16x16x32_bf16 {vr(acc16[j],4)}, {vr(fa16,4)}, {vr(fb16[j],4)}, {c}")
            if not last: rd16(n+1)
        if not last: rdB32(m+1)
        for i in range(4):
            need(("a", m, i), ("b", m))
            c = "0" if m == 0 else vr(acc32[i], 16)
            a.e(f"v_mfma_f32_32x32x16_bf16 {vr(acc32[i],16)}, {vr(fa32[i],4)}, {vr(fb32[m&1],4)}, {c}")
            if not last: rdA32(m+1, i)
            if hooks and (i & 1) == 0: a.e(hooks.pop(0))
        if q == 3:
            for x in hooks: a.e(x)
            hooks = []
            if stage + 1 < NSTG:
                if stage + 3 < NSTG: a.e("s_waitcnt vmcnt(8)")
                elif stage + 2 < NSTG: a.e("s_waitcnt vmcnt(0)")
                a.e("s_barrier")
            if stage % 4 == 3: stp.stamp()
    a.dropping = False
    a.e("s_waitcnt vmcnt(0)\ns_nop 7\ns_nop 3")
    for j in range(3):
        a.e(f"v_lshlrev_b32 v{vBs[j]}, 16, v{vBs[j]}")
    a.e(f"""
    s_lshl_b32 s39, s29, 5
    v_add_u32 v{vT[0]}, s39, v{vL15}
    v_mul_u32_u24 v{vT[0]}, 592, v{vT[0]}
    v_lshl_add_u32 v{vT[0]}, v{vG}, 4, v{vT[0]}
    v_add_u32 v{vT[1]}, s39, v{vL31}
    v_mul_u32_u24 v{vT[1]}, 592, v{vT[1]}
    v_lshl_add_u32 v{vT[1]}, v{vHH}, 4, v{vT[1]}
    """)
    for i in range(4):
        for r in range(16): a.e(f"v_add_f32 v{acc32[i]+r}, v{acc32[i]+r}, v{vBs[2]}")
    for j in range(2):
        for r in range(4): a.e(f"v_add_f32 v{acc16[j]+r}, v{acc16[j]+r}, v{vBs[j]}")
    a.e("s_barrier")
    for i in range(4):
        for q in range(4):
            a.e(f"ds_write_b128 v{vT[1]}, {vr(acc32[i]+4*q,4)} offset:{i*128 + q*32}")
    for j in range(2):
        a.e(f"ds_write_b128 v{vT[0]}, {vr(acc16[j],4)} offset:{j*16*592 + 512}")
    a.e("s_waitcnt lgkmcnt(0)\ns_branch kf_coop2")
    a.label("kf_coop")
    a.e("s_barrier")
    a.label("kf_coop2")
    cz = [8, 12, 16]; cg_ = [20, 28, 36]; ca = [44, 45, 46]; cl = [48, 49, 50]; ct = [52, 53, 54, 55]
    a.e(f"""
    s_and_b32 s39, s2, 7
    s_lshr_b32 s40, s2, 3
    s_and_b32 s41, s39, 3
    s_lshl_b32 s41, s41, 2
    s_and_b32 s42, s40, 3
    s_add_u32 s31, s41, s42
    s_lshr_b32 s41, s39, 2
    s_lshl_b32 s41, s41, 3
    s_lshr_b32 s42, s40, 2
    s_add_u32 s32, s41, s42
    s_mul_i32 s33, s31, 288
    s_lshl_b32 s34, s32, 7
    s_mul_i32 s42, s34, 4608
    s_add_u32 s42, s42, s33
    s_add_u32 s42, s42, {WS_Z1}
    s_mul_i32 s43, s34, 5760
    s_add_u32 s43, s43, s33
    s_add_u32 s43, s43, {WS_OH + 1152}
    s_movk_i32 s40, 4608
    s_movk_i32 s41, 5760
    """)
    for k in range(3):
        a.e(f"""
        v_add_u32 v{ct[0]}, {768*k}, v0
        v_mul_u32_u24 v{ct[1]}, 3641, v{ct[0]}
        v_lshrrev_b32 v{ct[1]}, 16, v{ct[1]}
        v_mul_u32_u24 v{ct[2]}, 18, v{ct[1]}
        v_sub_u32 v{ct[2]}, v{ct[0]}, v{ct[2]}
        v_lshlrev_b32 v{ct[3]}, 4, v{ct[2]}
        v_mad_u32_u24 v{ct[0]}, v{ct[1]}, s40, v{ct[3]}
        buffer_load_dwordx4 {vr(cz[k],4)}, v{ct[0]}, s[24:27], s42 offen
        v_mad_u32_u24 v{ca[k]}, v{ct[1]}, s41, v{ct[3]}
        v_mul_u32_u24 v{cl[k]}, 592, v{ct[1]}
        v_lshl_add_u32 v{cl[k]}, v{ct[2]}, 5, v{cl[k]}
        """)
    a.e("s_waitcnt lgkmcnt(0)\ns_barrier")
    for k in range(3):
        a.e(f"ds_read_b128 {vr(cg_[k],4)}, v{cl[k]}\nds_read_b128 {vr(cg_[k]+4,4)}, v{cl[k]} offset:16")
    for k in range(3):
        a.e(f"s_waitcnt vmcnt({2-k}) lgkmcnt({4-2*k})")
        for i in range(4):
            a.e(f"""
            v_lshlrev_b32 v{ct[0]}, 16, v{cz[k]+i}
            v_and_b32 v{ct[1]}, 0xffff0000, v{cz[k]+i}
            v_mul_f32 v{ct[0]}, v{ct[0]}, v{cg_[k]+2*i}
            v_mul_f32 v{ct[1]}, v{ct[1]}, v{cg_[k]+2*i+1}
            v_cvt_pk_bf16_f32 v{cz[k]+i}, v{ct[0]}, v{ct[1]}
            """)
    for k in range(3):
        a.e(f"buffer_store_dwordx4 {vr(cz[k],4)}, v{ca[k]}, s[24:27], s43 offen")
    for c in range(2304): assert (c*3641)>>16 == c//18
    stp.stamp()
    a.label(END)
    a.e("s_endpgm")
    a.end_kernel(name, max(nvA, nvG))
    print("kf vgprs", nvA, nvG)
```

```python
from asmlib import *
from layout import *
from k1 import ln_scalars
import os

def gen_kn(a):
    name = "kn_kernel"
    a.begin_kernel(name, 256, 512, 1024)
    va = VAlloc(1)
    vT0 = va.get(8, 4); vT = [vT0+i for i in range(8)]
    vZo = va.get(); vSo = va.get()
    zr = va.get(20, 4)
    sreg = va.get(32, 4)
    nrm = sreg + 16
    pf = va.get(2)
    nv = va.n
    END = "kn_end"
    a.e(f"""
    s_cmp_ge_u32 s2, 256
    s_cbranch_scc1 {END}
    s_load_dwordx2 s[14:15], s[0:1], 96
    s_load_dwordx2 s[4:5], s[0:1], 32
    s_load_dwordx2 s[6:7], s[0:1], 56
    s_load_dwordx2 s[8:9], s[0:1], 72
    v_lshrrev_b32 v{vT[0]}, 6, v0
    s_nop 0
    v_readfirstlane_b32 s28, v{vT[0]}
    s_mov_b32 s45, 0xffff0000
    s_lshr_b32 s32, s2, 4
    s_and_b32 s33, s2, 15
    v_and_b32 v{vT[3]}, 15, v0
    v_lshrrev_b32 v{vT[4]}, 4, v0
    v_lshlrev_b32 v{vT[4]}, 12, v{vT[4]}
    v_lshl_add_u32 v{vZo}, v{vT[3]}, 4, v{vT[4]}
    v_lshlrev_b32 v{vSo}, 3, v0
    s_mul_i32 s39, s32, {144*4096}
    s_lshl_b32 s40, s33, 8
    s_add_u32 s39, s39, s40
    s_add_u32 s34, s39, {WS_Z2N}
    s_add_u32 s36, s39, {WS_Z2T}
    s_lshl_b32 s39, s2, 8
    v_and_b32 v{vT[2]}, 255, v0
    v_add_u32 v{vT[2]}, s39, v{vT[2]}
    v_lshlrev_b32 v{vT[2]}, 7, v{vT[2]}
    s_waitcnt lgkmcnt(0)
    s_mov_b32 s24, s14
    s_mov_b32 s25, s15
    s_mov_b32 s26, 0x10000000
    s_mov_b32 s27, 0x00020000
    s_mov_b32 s52, s6
    s_mov_b32 s53, s7
    s_mov_b32 s54, {S*S*2}
    s_mov_b32 s55, 0x00020000
    s_mov_b32 s56, s4
    s_mov_b32 s57, s5
    s_mov_b32 s58, {D*D*2}
    s_mov_b32 s59, 0x00020000
    s_mov_b32 s60, s8
    s_mov_b32 s61, s9
    s_mov_b32 s62, {FH*D*2}
    s_mov_b32 s63, 0x00020000
    s_cmp_ge_u32 s28, 2
    s_cbranch_scc1 kn_nostat0
    s_lshl_b32 s39, s33, 10
    s_add_u32 s39, s39, {WS_STAT}
    """)
    for p in range(16):
        a.e(f"buffer_load_dwordx2 {vr(sreg+2*p,2)}, v{vSo}, s[24:27], s39 offen\ns_add_u32 s39, s39, 16384")
    a.label("kn_nostat0")
    for p in range(4):
        a.e(f"buffer_load_dwordx4 {vr(zr+4*p,4)}, v{vZo}, s[24:27], s36 offen\ns_add_u32 s36, s36, {32*4096}")
    a.e(f"""
    s_cmp_ge_u32 s28, 4
    s_cbranch_scc1 kn_a
    buffer_load_dwordx4 {vr(zr+16,4)}, v{vZo}, s[24:27], s36 offen
    kn_a:
    s_cmp_ge_u32 s28, 2
    s_cbranch_scc1 kn_nostat
    s_waitcnt vmcnt(5)
    """)
    for p in range(1, 16):
        a.e(f"v_add_f32 v{sreg}, v{sreg}, v{sreg+2*p}\nv_add_f32 v{sreg+1}, v{sreg+1}, v{sreg+2*p+1}")
    ln_scalars(a, sreg, sreg+1, FH, sreg+2, sreg+3, vT[4], vT[5], vT[6])
    a.e(f"ds_write_b64 v{vSo}, {vr(sreg+2,2)}")
    a.label("kn_nostat")
    a.e(f"""
    s_waitcnt lgkmcnt(0)
    s_barrier
    v_lshlrev_b32 v{vT[5]}, 6, v{vT[3]}
    """)
    for i in range(4):
        a.e(f"ds_read_b128 {vr(nrm+4*i,4)}, v{vT[5]} offset:{16*i}")
    a.e("s_waitcnt vmcnt(0) lgkmcnt(0)")
    def norm_chunk(p):
        for i in range(4):
            w = zr + 4*p + i
            a.e(f"""
            v_lshlrev_b32 v{vT[0]}, 16, v{w}
            v_and_b32 v{vT[1]}, s45, v{w}
            v_fma_f32 v{vT[0]}, v{vT[0]}, v{nrm+4*i}, v{nrm+4*i+1}
            v_fma_f32 v{vT[1]}, v{vT[1]}, v{nrm+4*i+2}, v{nrm+4*i+3}
            v_cvt_pk_bf16_f32 v{w}, v{vT[0]}, v{vT[1]}
            """)
        a.e(f"buffer_store_dwordx4 {vr(zr+4*p,4)}, v{vZo}, s[24:27], s34 offen\ns_add_u32 s34, s34, {32*4096}")
    for p in range(4): norm_chunk(p)
    a.e(f"s_cmp_ge_u32 s28, 4\ns_cbranch_scc1 {END}")
    norm_chunk(4)
    a.label(END)
    a.e("s_endpgm")
    a.end_kernel(name, nv, 80)
    print("kn vgprs", nv)
```

```python
from asmlib import *
from layout import *
import os

def gen_k4(a):
    name = "k4_kernel"
    STG = 20480; WOFF = 8192
    NSLOT = 6
    NSTG = 45
    a.begin_kernel(name, 192, 512, NSLOT*STG)
    va = VAlloc(1)
    vL = va.get(); vL15 = va.get(); vG = va.get()
    vT0 = va.get(8, 4); vT = [vT0+i for i in range(8)]
    vDA = va.get()
    vDW = [va.get(), va.get()]
    vA = [va.get(), va.get()]
    vWi = [[va.get() for i in range(3)] for h in range(2)]
    vX = va.get()
    acc = [[va.get(4, 4) for j in range(2)] for i in range(3)]
    fa = [[va.get(4, 4) for j in range(2)] for s in range(2)]
    fw = [[va.get(4, 4) for i in range(3)] for s in range(2)]
    xr = [[va.get(2, 2) for j in range(2)] for i in range(3)]
    vst = va.get(2)
    stp = Stamps(a, bool(os.environ.get('STAMPS4')), 24, vst, wg=int(os.environ.get('STWG','0')))
    nv = va.n
    END = "k4_end"
    a.e(f"""
    s_cmp_ge_u32 s2, 192
    s_cbranch_scc1 {END}
    s_load_dwordx2 s[4:5], s[0:1], 0
    s_load_dwordx2 s[6:7], s[0:1], 32
    s_load_dwordx4 s[8:11], s[0:1], 72
    s_load_dwordx2 s[14:15], s[0:1], 96
    v_lshrrev_b32 v{vT[0]}, 6, v0
    v_and_b32 v{vL}, 63, v0
    s_nop 0
    v_readfirstlane_b32 s28, v{vT[0]}
    v_and_b32 v{vL15}, 15, v{vL}
    v_lshrrev_b32 v{vG}, 4, v{vL}
    s_and_b32 s29, s28, 1
    s_bfe_u32 s30, s28, 0x10001
    s_lshr_b32 s35, s28, 2
    s_and_b32 s39, s2, 7
    s_lshr_b32 s40, s2, 3
    s_lshl_b32 s39, s39, 2
    s_and_b32 s41, s40, 3
    s_add_u32 s31, s39, s41
    s_lshr_b32 s32, s40, 2
    s_lshl_b32 s33, s31, 6
    s_mul_i32 s34, s32, 96
    """)
    a.e(f"""
    v_lshrrev_b32 v{vT[0]}, 3, v{vL}
    v_and_b32 v{vT[1]}, 7, v{vL}
    v_lshrrev_b32 v{vT[2]}, 1, v{vT[0]}
    v_xor_b32 v{vT[1]}, v{vT[1]}, v{vT[2]}
    s_lshl_b32 s39, s29, 2
    v_xor_b32 v{vT[1]}, s39, v{vT[1]}
    v_mul_u32_u24 v{vT[0]}, 5760, v{vT[0]}
    v_lshl_add_u32 v{vDA}, v{vT[1]}, 4, v{vT[0]}
    """)
    a.e(f"""
    s_lshl_b32 s60, s28, 1
    s_add_u32 s39, s28, 4
    s_cmp_ge_u32 s28, 4
    s_cselect_b32 s60, s39, s60
    s_add_u32 s61, s60, 1
    """)
    for k in range(2):
        a.e(f"""
        s_mul_i32 s39, s{60+k}, 86
        s_lshr_b32 s39, s39, 8
        s_mul_i32 s40, s39, 3
        s_sub_u32 s40, s{60+k}, s40
        s_lshl_b32 s41, s40, 6
        v_add_u32 v{vT[0]}, s41, v{vL}
        v_mul_u32_u24 v{vT[1]}, 5462, v{vT[0]}
        v_lshrrev_b32 v{vT[1]}, 16, v{vT[1]}
        v_mul_u32_u24 v{vT[2]}, 12, v{vT[1]}
        v_sub_u32 v{vT[2]}, v{vT[0]}, v{vT[2]}
        v_bfe_u32 v{vT[3]}, v{vT[1]}, 3, 1
        v_lshlrev_b32 v{vT[3]}, 1, v{vT[3]}
        v_xor_b32 v{vT[2]}, v{vT[2]}, v{vT[3]}
        v_mul_u32_u24 v{vT[1]}, 1152, v{vT[1]}
        v_lshl_add_u32 v{vDW[k]}, v{vT[2]}, 4, v{vT[1]}
        s_mul_i32 s{62+k}, s39, {16*1152}
        s_lshl_b32 s41, s34, 1
        s_add_u32 s{62+k}, s{62+k}, s41
        s_lshl_b32 s{64+k}, s{60+k}, 10
        s_add_u32 s{64+k}, s{64+k}, {WOFF}
        """)
    a.e(f"""
    v_bfe_u32 v{vT[1]}, v{vL15}, 1, 3
    s_lshl_b32 s39, s35, 2
    v_add_u32 v{vT[0]}, s39, v{vG}
    v_xor_b32 v{vT[0]}, v{vT[0]}, v{vT[1]}
    s_lshl_b32 s39, s29, 5
    v_add_u32 v{vT[2]}, s39, v{vL15}
    v_lshlrev_b32 v{vT[2]}, 7, v{vT[2]}
    v_lshl_add_u32 v{vA[0]}, v{vT[0]}, 4, v{vT[2]}
    v_add_u32 v{vA[1]}, {3*STG}, v{vA[0]}
    v_bfe_u32 v{vT[0]}, v{vL}, 2, 2
    v_lshl_add_u32 v{vT[0]}, v{vG}, 3, v{vT[0]}
    s_lshl_b32 s39, s35, 5
    v_add_u32 v{vT[0]}, s39, v{vT[0]}
    v_mul_u32_u24 v{vT[0]}, 192, v{vT[0]}
    v_and_b32 v{vT[1]}, 3, v{vL}
    v_lshl_add_u32 v{vT[0]}, v{vT[1]}, 3, v{vT[0]}
    v_add_u32 v{vT[0]}, {WOFF}, v{vT[0]}
    v_and_b32 v{vT[1]}, 1, v{vG}
    s_mul_i32 s39, s30, 3
    """)
    for i in range(3):
        a.e(f"""
        s_add_u32 s40, s39, {i}
        v_xor_b32 v{vT[2]}, s40, v{vT[1]}
        v_lshl_add_u32 v{vWi[0][i]}, v{vT[2]}, 5, v{vT[0]}
        v_add_u32 v{vWi[1][i]}, {3*STG}, v{vWi[0][i]}
        """)
    a.e(f"""
    s_waitcnt lgkmcnt(0)
    s_mov_b32 s16, s4
    s_mov_b32 s17, s5
    s_mov_b32 s18, {S*D*2}
    s_mov_b32 s19, 0x00020000
    s_mov_b32 s20, s6
    s_mov_b32 s21, s7
    s_mov_b32 s22, {D*D*2}
    s_mov_b32 s23, 0x00020000
    s_mov_b32 s24, s14
    s_mov_b32 s25, s15
    s_mov_b32 s26, 0x10000000
    s_mov_b32 s27, 0x00020000
    s_mov_b32 s52, s8
    s_mov_b32 s53, s9
    s_mov_b32 s54, {FH*D*2}
    s_mov_b32 s55, 0x00020000
    s_mov_b32 s56, s10
    s_mov_b32 s57, s11
    s_mov_b32 s58, {S*D*2}
    s_mov_b32 s59, 0x00020000
    s_lshl_b32 s39, s28, 3
    s_add_u32 s40, s33, s39
    s_mul_i32 s44, s40, 5760
    s_add_u32 s44, s44, {WS_OH}
    s_lshl_b32 s47, s28, 10
    """)
    def dma(stage):
        sl = (stage % NSLOT) * STG
        k = stage * 128
        if stage < 9: srd, kw = "s[20:23]", stage*64*1152
        else: srd, kw = "s[52:55]", (stage-9)*64*1152
        L = a.newlabel("k4d")
        a.e(f"""
        s_add_u32 m0, s47, {sl}
        s_add_u32 s50, s44, {k}
        buffer_load_dwordx4 v{vDA}, s[24:27], s50 offen lds
        s_add_u32 m0, s64, {sl}
        s_add_u32 s50, s62, {kw}
        buffer_load_dwordx4 v{vDW[0]}, {srd}, s50 offen lds
        s_cmp_ge_u32 s28, 4
        s_cbranch_scc1 {L}
        s_add_u32 m0, s65, {sl}
        s_add_u32 s50, s63, {kw}
        buffer_load_dwordx4 v{vDW[1]}, {srd}, s50 offen lds
        {L}:
        """)
    def reads(stage):
        st = stage & 1
        sl = stage % NSLOT
        hb = sl // 3; off = (sl % 3) * STG
        for j in range(2):
            a.e(f"ds_read_b128 {vr(fa[st][j],4)}, v{vA[hb]} offset:{off + j*2048}")
        for i in range(3):
            for h in range(2):
                a.e(f"ds_read_b64_tr_b16 {vr(fw[st][i]+2*h,2)}, v{vWi[hb][i]} offset:{off + 4*h*192}")
    PF = NSLOT - 1
    stp.init(28, WS_END)
    stp.stamp()
    for s_ in range(PF): dma(s_)
    a.e(f"s_waitcnt vmcnt({2*(PF-1)})\ns_barrier")
    reads(0)
    for i in range(NSTG):
        if i + 1 < NSTG:
            inflight_after = min(NSTG - 1, i + PF - 1) - (i + 1)
            a.e(f"s_waitcnt vmcnt({2*inflight_after}) lgkmcnt(0)\ns_barrier")
            reads(i+1)
            if i + PF < NSTG: dma(i+PF)
        else:
            a.e("s_waitcnt lgkmcnt(0)")
        if i % 5 == 0: stp.stamp()
        st = i & 1
        for ii in range(3):
            for j in range(2):
                c = "0" if i == 0 else vr(acc[ii][j], 4)
                a.e(f"v_mfma_f32_16x16x32_bf16 {vr(acc[ii][j],4)}, {vr(fw[st][ii],4)}, {vr(fa[st][j],4)}, {c}")
        if i == NSTG - 4:
            a.e(f"""
            s_lshl_b32 s39, s29, 5
            s_add_u32 s39, s39, s33
            v_add_u32 v{vT[0]}, s39, v{vL15}
            v_lshlrev_b32 v{vT[1]}, 3, v{vG}
            s_movk_i32 s40, 1152
            v_mad_u32_u24 v{vX}, v{vT[0]}, s40, v{vT[1]}
            v_add_u32 v{vT[2]}, {16*1152}, v{vX}
            s_mul_i32 s41, s30, 96
            s_lshl_b32 s42, s34, 1
            s_add_u32 s42, s42, s41
            """)
    for ii in range(3):
        for j in range(2):
            a.e(f"buffer_load_dwordx2 {vr(xr[ii][j],2)}, v{vX if j==0 else vT[2]}, s[16:19], s42 offen offset:{ii*32}")
    a.e(f"""
    s_barrier
    s_and_b32 s39, s28, 3
    s_mul_i32 s39, s39, 6144
    v_lshlrev_b32 v{vT[0]}, 4, v{vL}
    v_add_u32 v{vT[0]}, s39, v{vT[0]}
    s_nop 4
    s_cmp_eq_u32 s35, 0
    s_cbranch_scc1 k4_lo
    """)
    for ii in range(3):
        for j in range(2):
            a.e(f"ds_write_b128 v{vT[0]}, {vr(acc[ii][j],4)} offset:{(ii*2+j)*1024}")
    a.e(f"s_waitcnt lgkmcnt(0)\ns_barrier\ns_branch {END}")
    a.label("k4_lo")
    a.e("s_barrier")
    other = [fa[0][0], fa[0][1], fa[1][0], fa[1][1], fw[0][0], fw[0][1]]
    for ii in range(3):
        for j in range(2):
            a.e(f"ds_read_b128 {vr(other[ii*2+j],4)}, v{vT[0]} offset:{(ii*2+j)*1024}")
    a.e("s_waitcnt vmcnt(0) lgkmcnt(0)")
    for ii in range(3):
        for j in range(2):
            ac = acc[ii][j]; z = xr[ii][j]; o = other[ii*2+j]
            a.e(f"""
            v_lshlrev_b32 v{vT[4]}, 16, v{z}
            v_and_b32 v{vT[5]}, 0xffff0000, v{z}
            v_lshlrev_b32 v{vT[6]}, 16, v{z+1}
            v_and_b32 v{vT[7]}, 0xffff0000, v{z+1}
            """)
            for r in range(4): a.e(f"v_add_f32 v{ac+r}, v{ac+r}, v{o+r}")
            for r in range(4): a.e(f"v_add_f32 v{ac+r}, v{ac+r}, v{vT[4+r]}")
            a.e(f"""
            v_cvt_pk_bf16_f32 v{ac}, v{ac}, v{ac+1}
            v_cvt_pk_bf16_f32 v{ac+1}, v{ac+2}, v{ac+3}
            buffer_store_dwordx2 {vr(ac,2)}, v{vX if j==0 else vT[2]}, s[56:59], s42 offen offset:{ii*32}
            """)
    stp.stamp()
    a.label(END)
    a.e("s_endpgm")
    a.end_kernel(name, nv)
    print("k4 vgprs", nv)
    for p in range(192): assert (p*5462)>>16 == p//12
    for p in range(13): assert (p*86)>>8 == p//3
```

```python
from asmlib import *
from layout import *
import os

def gen_k4(a):
    name = "k4_kernel"
    STG = 20480; WOFF = 8192
    NSLOT = int(os.environ.get('K4SLOT', '7'))
    NSTG = 45
    a.begin_kernel(name, 192, 256, NSLOT*STG)
    va = VAlloc(1)
    vL = va.get(); vL15 = va.get(); vG = va.get()
    vT0 = va.get(8, 4); vT = [vT0+i for i in range(8)]
    vDA = [va.get(), va.get()]
    vDW = [va.get(), va.get(), va.get()]
    vA = [[va.get() for p in range(2)] for h in range(3)]
    vW = [va.get(), va.get()]
    vX = va.get();
    acc = [[va.get(4, 4) for j in range(2)] for i in range(3)]
    fa = [[[va.get(4, 4) for j in range(2)] for k in range(2)] for s in range(2)]
    fw = [[[va.get(4, 4) for i in range(3)] for k in range(2)] for s in range(2)]
    xr = [[va.get(2, 2) for j in range(2)] for i in range(3)]
    nv = va.n
    END = "k4_end"
    a.e(f"""
    s_cmp_ge_u32 s2, 192
    s_cbranch_scc1 {END}
    s_load_dwordx2 s[4:5], s[0:1], 0
    s_load_dwordx2 s[6:7], s[0:1], 32
    s_load_dwordx4 s[8:11], s[0:1], 72
    s_load_dwordx2 s[14:15], s[0:1], 96
    v_lshrrev_b32 v{vT[0]}, 6, v0
    v_and_b32 v{vL}, 63, v0
    s_nop 0
    v_readfirstlane_b32 s28, v{vT[0]}
    v_and_b32 v{vL15}, 15, v{vL}
    v_lshrrev_b32 v{vG}, 4, v{vL}
    s_and_b32 s29, s28, 1
    s_lshr_b32 s30, s28, 1
    """)
    a.e(f"""
    s_and_b32 s39, s2, 7
    s_lshr_b32 s40, s2, 3
    s_lshl_b32 s39, s39, 2
    s_and_b32 s41, s40, 3
    s_add_u32 s31, s39, s41
    s_lshr_b32 s32, s40, 2
    s_lshl_b32 s33, s31, 6
    s_mul_i32 s34, s32, 96
    """)
    a.e(f"""
    v_lshrrev_b32 v{vT[0]}, 3, v{vL}
    v_and_b32 v{vT[1]}, 7, v{vL}
    v_lshrrev_b32 v{vT[2]}, 1, v{vT[0]}
    v_xor_b32 v{vT[1]}, v{vT[1]}, v{vT[2]}
    v_mul_u32_u24 v{vT[0]}, 5760, v{vT[0]}
    v_lshl_add_u32 v{vDA[0]}, v{vT[1]}, 4, v{vT[0]}
    v_xor_b32 v{vT[1]}, 4, v{vT[1]}
    v_lshl_add_u32 v{vDA[1]}, v{vT[1]}, 4, v{vT[0]}
    """)
    for i in range(3):
        a.e(f"""
        v_add_u32 v{vT[0]}, {64*i}, v{vL}
        v_mul_u32_u24 v{vT[1]}, 5462, v{vT[0]}
        v_lshrrev_b32 v{vT[1]}, 16, v{vT[1]}
        v_mul_u32_u24 v{vT[2]}, 12, v{vT[1]}
        v_sub_u32 v{vT[2]}, v{vT[0]}, v{vT[2]}
        v_bfe_u32 v{vT[3]}, v{vT[1]}, 3, 1
        v_lshlrev_b32 v{vT[3]}, 1, v{vT[3]}
        v_xor_b32 v{vT[2]}, v{vT[2]}, v{vT[3]}
        v_mul_u32_u24 v{vT[1]}, 1152, v{vT[1]}
        v_lshl_add_u32 v{vDW[i]}, v{vT[2]}, 4, v{vT[1]}
        """)
    a.e(f"""
    v_bfe_u32 v{vT[1]}, v{vL15}, 1, 3
    v_xor_b32 v{vT[0]}, v{vG}, v{vT[1]}
    s_lshl_b32 s39, s29, 5
    v_add_u32 v{vT[2]}, s39, v{vL15}
    v_lshlrev_b32 v{vT[2]}, 7, v{vT[2]}
    v_lshl_add_u32 v{vA[0][0]}, v{vT[0]}, 4, v{vT[2]}
    v_xor_b32 v{vT[0]}, 4, v{vT[0]}
    v_lshl_add_u32 v{vA[0][1]}, v{vT[0]}, 4, v{vT[2]}
    v_add_u32 v{vA[1][0]}, {3*STG}, v{vA[0][0]}
    v_add_u32 v{vA[1][1]}, {3*STG}, v{vA[0][1]}
    v_add_u32 v{vA[2][0]}, {6*STG}, v{vA[0][0]}
    v_add_u32 v{vA[2][1]}, {6*STG}, v{vA[0][1]}
    """)
    vWi = [[va.get() for i in range(3)] for h in range(3)]
    vst = va.get(2)
    stp = Stamps(a, bool(os.environ.get('STAMPS4')), 24, vst, wg=int(os.environ.get('STWG','0')))
    nv = va.n
    a.e(f"""
    v_bfe_u32 v{vT[0]}, v{vL}, 2, 2
    v_lshl_add_u32 v{vT[0]}, v{vG}, 3, v{vT[0]}
    v_mul_u32_u24 v{vT[0]}, 192, v{vT[0]}
    v_and_b32 v{vT[1]}, 3, v{vL}
    v_lshl_add_u32 v{vT[0]}, v{vT[1]}, 3, v{vT[0]}
    v_add_u32 v{vT[0]}, {WOFF}, v{vT[0]}
    v_and_b32 v{vT[1]}, 1, v{vG}
    s_mul_i32 s39, s30, 3
    """)
    for i in range(3):
        a.e(f"""
        s_add_u32 s40, s39, {i}
        v_xor_b32 v{vT[2]}, s40, v{vT[1]}
        v_lshl_add_u32 v{vWi[0][i]}, v{vT[2]}, 5, v{vT[0]}
        v_add_u32 v{vWi[1][i]}, {3*STG}, v{vWi[0][i]}
        v_add_u32 v{vWi[2][i]}, {6*STG}, v{vWi[0][i]}
        """)
    a.e(f"""
    s_waitcnt lgkmcnt(0)
    s_mov_b32 s16, s4
    s_mov_b32 s17, s5
    s_mov_b32 s18, {S*D*2}
    s_mov_b32 s19, 0x00020000
    s_mov_b32 s20, s6
    s_mov_b32 s21, s7
    s_mov_b32 s22, {D*D*2}
    s_mov_b32 s23, 0x00020000
    s_mov_b32 s24, s14
    s_mov_b32 s25, s15
    s_mov_b32 s26, 0x10000000
    s_mov_b32 s27, 0x00020000
    s_mov_b32 s52, s8
    s_mov_b32 s53, s9
    s_mov_b32 s54, {FH*D*2}
    s_mov_b32 s55, 0x00020000
    s_mov_b32 s56, s10
    s_mov_b32 s57, s11
    s_mov_b32 s58, {S*D*2}
    s_mov_b32 s59, 0x00020000
    """)
    a.e(f"""
    s_lshl_b32 s39, s28, 4
    s_add_u32 s40, s33, s39
    s_mul_i32 s44, s40, 5760
    s_add_u32 s44, s44, {WS_OH}
    s_mul_i32 s46, s39, 1152
    s_lshl_b32 s40, s34, 1
    s_add_u32 s46, s46, s40
    s_lshl_b32 s47, s28, 11
    s_mul_i32 s49, s28, 3072
    s_add_u32 s49, s49, {WOFF}
    """)
    def dma(stage):
        sl = (stage % NSLOT) * STG
        k = stage * 128
        if stage < 9: srd, kw = "s[20:23]", stage*64*1152
        else: srd, kw = "s[52:55]", (stage-9)*64*1152
        a.e(f"""
        s_add_u32 m0, s47, {sl}
        s_add_u32 s50, s44, {k}
        buffer_load_dwordx4 v{vDA[0]}, s[24:27], s50 offen lds
        s_add_u32 m0, s47, {sl+1024}
        s_add_u32 s50, s44, {k+8*5760}
        buffer_load_dwordx4 v{vDA[1]}, s[24:27], s50 offen lds
        s_add_u32 s50, s46, {kw}
        """)
        for i in range(3):
            a.e(f"""
            s_add_u32 m0, s49, {sl+1024*i}
            s_nop 0
            buffer_load_dwordx4 v{vDW[i]}, {srd}, s50 offen lds
            """)
    def reads(stage):
        st = stage & 1
        sl = stage % NSLOT
        hb = sl // 3; off = (sl % 3) * STG
        for kk in range(2):
            for j in range(2):
                a.e(f"ds_read_b128 {vr(fa[st][kk][j],4)}, v{vA[hb][kk]} offset:{off + j*2048}")
            for i in range(3):
                for h in range(2):
                    a.e(f"ds_read_b64_tr_b16 {vr(fw[st][kk][i]+2*h,2)}, v{vWi[hb][i]} offset:{off + (32*kk+4*h)*192}")
    PF = NSLOT - 1
    stp.init(28, WS_END)
    stp.stamp()
    for s_ in range(PF): dma(s_)
    a.e(f"s_waitcnt vmcnt({5*(PF-1)})\ns_barrier")
    reads(0)
    for i in range(NSTG):
        if i + 1 < NSTG:
            inflight_after = min(NSTG - 1, i + PF - 1) - (i + 1)
            a.e(f"s_waitcnt vmcnt({5*inflight_after}) lgkmcnt(0)\ns_barrier")
            reads(i+1)
            if i + PF < NSTG: dma(i+PF)
        else:
            a.e("s_waitcnt lgkmcnt(0)")
        if i % 5 == 0: stp.stamp()
        st = i & 1
        for kk in range(2):
            for ii in range(3):
                for j in range(2):
                    c = "0" if (i == 0 and kk == 0) else vr(acc[ii][j], 4)
                    a.e(f"v_mfma_f32_16x16x32_bf16 {vr(acc[ii][j],4)}, {vr(fw[st][kk][ii],4)}, {vr(fa[st][kk][j],4)}, {c}")
    a.e(f"""
    s_lshl_b32 s39, s29, 5
    s_add_u32 s39, s39, s33
    v_add_u32 v{vT[0]}, s39, v{vL15}
    v_lshlrev_b32 v{vT[1]}, 3, v{vG}
    s_movk_i32 s40, 1152
    v_mad_u32_u24 v{vX}, v{vT[0]}, s40, v{vT[1]}
    v_add_u32 v{vT[2]}, {16*1152}, v{vX}
    s_mul_i32 s41, s30, 96
    s_lshl_b32 s42, s34, 1
    s_add_u32 s42, s42, s41
    """)
    for ii in range(3):
        for j in range(2):
            a.e(f"buffer_load_dwordx2 {vr(xr[ii][j],2)}, v{vX if j==0 else vT[2]}, s[16:19], s42 offen offset:{ii*32}")
    a.e("s_waitcnt vmcnt(0)\ns_nop 4")
    for ii in range(3):
        for j in range(2):
            ac = acc[ii][j]; z = xr[ii][j]
            a.e(f"""
            v_lshlrev_b32 v{vT[4]}, 16, v{z}
            v_and_b32 v{vT[5]}, 0xffff0000, v{z}
            v_lshlrev_b32 v{vT[6]}, 16, v{z+1}
            v_and_b32 v{vT[7]}, 0xffff0000, v{z+1}
            """)
            for r in range(4): a.e(f"v_add_f32 v{ac+r}, v{ac+r}, v{vT[4+r]}")
            a.e(f"""
            v_cvt_pk_bf16_f32 v{ac}, v{ac}, v{ac+1}
            v_cvt_pk_bf16_f32 v{ac+1}, v{ac+2}, v{ac+3}
            buffer_store_dwordx2 {vr(ac,2)}, v{vX if j==0 else vT[2]}, s[56:59], s42 offen offset:{ii*32}
            """)
    stp.stamp()
    a.label(END)
    a.e("s_endpgm")
    a.end_kernel(name, nv)
    print("k4 vgprs", nv)
    for p in range(192): assert (p*5462)>>16 == p//12
```

```python
from asmlib import *
from layout import *
import math, os

GK0 = -2.0*math.log2(math.e)*math.sqrt(2.0/math.pi)
GK1 = GK0*0.044715

def rnd_bf16(a, v, tmp):
    a.e(f"v_cvt_pk_bf16_f32 v{tmp}, v{v}, v{v}")
    a.e(f"v_lshlrev_b32 v{v}, 16, v{tmp}")

def ln_scalars(a, vsum, vsq, n, vr_out, vnb_out, t0, t1, t2):
    a.e(f"""
    v_mul_f32 v{t1}, 0x{f2u(1.0/n):08x}, v{vsum}
    v_mul_f32 v{t0}, 0x{f2u(1.0/n):08x}, v{vsq}
    v_fma_f32 v{t0}, -v{t1}, v{t1}, v{t0}
    v_max_f32 v{t0}, 0, v{t0}
    """)
    rnd_bf16(a, t1, t2)
    rnd_bf16(a, t0, t2)
    a.e(f"v_add_f32 v{t0}, 0x{f2u(1e-5):08x}, v{t0}")
    rnd_bf16(a, t0, t2)
    a.e(f"v_sqrt_f32 v{t0}, v{t0}\ns_nop 0")
    rnd_bf16(a, t0, t2)
    a.e(f"v_rcp_f32 v{vr_out}, v{t0}\ns_nop 0")
    a.e(f"v_mul_f32 v{vnb_out}, v{t1}, v{vr_out}")
    a.e(f"v_sub_f32 v{vnb_out}, 0, v{vnb_out}")

def gelu_regs(a, regs, tmps, sK1, vK0, hook=None):
    n = len(tmps)
    hook = hook or (lambda: None)
    for i in range(0, len(regs), n):
        grp = regs[i:i+n]
        for x, t in zip(grp, tmps): a.e(f"v_mul_f32 v{t}, v{x}, v{x}")
        for x, t in zip(grp, tmps): a.e(f"v_fma_f32 v{t}, v{t}, s{sK1}, v{vK0}")
        for x, t in zip(grp, tmps): a.e(f"v_mul_f32 v{t}, v{t}, v{x}")
        hook()
        for x, t in zip(grp, tmps): a.e(f"v_exp_f32 v{t}, v{t}")
        for x, t in zip(grp, tmps): a.e(f"v_add_f32 v{t}, 1.0, v{t}")
        hook()
        for x, t in zip(grp, tmps): a.e(f"v_rcp_f32 v{t}, v{t}")
        for x, t in zip(grp, tmps): a.e(f"v_mul_f32 v{x}, v{x}, v{t}")
        hook()

def gelu_items(regs, tmps, sK1, vK0):
    L = []
    n = len(tmps)
    for i in range(0, len(regs), n):
        grp = regs[i:i+n]
        for x, t in zip(grp, tmps): L.append(f"v_mul_f32 v{t}, v{x}, v{x}")
        for x, t in zip(grp, tmps): L.append(f"v_fma_f32 v{t}, v{t}, s{sK1}, v{vK0}")
        for x, t in zip(grp, tmps): L.append(f"v_mul_f32 v{t}, v{t}, v{x}")
        for x, t in zip(grp, tmps): L.append(f"v_exp_f32 v{t}, v{t}")
        for x, t in zip(grp, tmps): L.append(f"v_add_f32 v{t}, 1.0, v{t}")
        for x, t in zip(grp, tmps): L.append(f"v_rcp_f32 v{t}, v{t}")
        for x, t in zip(grp, tmps): L.append(f"v_mul_f32 v{x}, v{x}, v{t}")
    return L

def gen_k1(a):
    name = "k1_kernel"
    BUF = 36864
    a.begin_kernel(name, 256, 512, 4*BUF)
    va = VAlloc(1)
    vL = va.get(); vL15 = va.get(); vG = va.get(); vL31 = va.get(); vHH = va.get()
    vRowl = va.get(); vChunk16 = va.get(); vDma = va.get()
    vW = va.get(); vWb = va.get()
    vK0 = va.get()
    vO = [va.get(), va.get()]
    vT0 = va.get(8, 4); vT = [vT0+i for i in range(8)]
    xr = [va.get(4, 4) for t in range(36)]
    acc = va.get(16, 4)
    NS = 4
    Wf = [va.get(4, 4) for s in range(NS)]
    prv = va.get(16, 4)
    st = va.get(32, 4)
    en = bool(os.environ.get('STAMPS'))
    vst = va.get(2) if en else 0
    stp = Stamps(a, en, 24, vst, wg=int(os.environ.get('STWG','0')))
    nv = va.n
    ones = st + 28
    adr = st + 16
    wpre = Wf[0]
    assert prv == Wf[0] + 16 and st == prv + 16
    END = "k1_end"
    a.e(f"""
    s_cmp_ge_u32 s2, 256
    s_cbranch_scc1 {END}
    s_load_dwordx4 s[4:7], s[0:1], 0
    s_load_dwordx4 s[8:11], s[0:1], 16
    s_load_dwordx4 s[12:15], s[0:1], 48
    s_load_dwordx2 s[64:65], s[0:1], 96
    v_lshrrev_b32 v{vT[0]}, 6, v0
    v_and_b32 v{vL}, 63, v0
    s_nop 0
    v_readfirstlane_b32 s28, v{vT[0]}
    v_and_b32 v{vL15}, 15, v{vL}
    v_lshrrev_b32 v{vG}, 4, v{vL}
    v_and_b32 v{vL31}, 31, v{vL}
    v_lshrrev_b32 v{vHH}, 5, v{vL}
    s_lshr_b32 s29, s28, 2
    s_and_b32 s30, s28, 3
    s_and_b32 s39, s2, 7
    s_lshr_b32 s40, s2, 3
    s_and_b32 s41, s39, 3
    s_lshl_b32 s41, s41, 2
    s_and_b32 s42, s40, 3
    s_add_u32 s31, s41, s42
    s_lshr_b32 s41, s39, 2
    s_lshl_b32 s41, s41, 3
    s_lshr_b32 s42, s40, 2
    s_add_u32 s32, s41, s42
    s_mul_i32 s33, s32, 10
    s_min_u32 s39, s32, 4
    s_add_u32 s33, s33, s39
    s_cmp_lt_u32 s32, 4
    s_cselect_b32 s34, 11, 10
    s_lshl_b32 s36, s31, 7
    s_lshl_b32 s39, s30, 5
    s_add_u32 s36, s36, s39
    s_mov_b32 s44, 0x{f2u(GK1):08x}
    s_mov_b32 s45, 0xffff0000
    """)
    a.e(f"""
    v_lshrrev_b32 v{vT[0]}, 3, v{vL}
    v_and_b32 v{vT[1]}, 7, v{vL}
    v_lshrrev_b32 v{vT[2]}, 1, v{vT[0]}
    v_xor_b32 v{vT[1]}, v{vT[1]}, v{vT[2]}
    v_mul_u32_u24 v{vT[0]}, 1152, v{vT[0]}
    v_lshl_add_u32 v{vT[4]}, v{vT[1]}, 4, v{vT[0]}
    v_xor_b32 v{vT[1]}, 4, v{vT[1]}
    v_lshl_add_u32 v{vT[5]}, v{vT[1]}, 4, v{vT[0]}
    s_lshl_b32 s39, s31, 7
    s_lshl_b32 s40, s28, 4
    s_add_u32 s39, s39, s40
    s_mul_i32 s39, s39, 1152
    s_lshl_b32 s43, s28, 11
    s_waitcnt lgkmcnt(0)
    s_mov_b32 s16, s4
    s_mov_b32 s17, s5
    s_mov_b32 s18, {S*D*2}
    s_mov_b32 s19, 0x00020000
    s_mov_b32 s24, s64
    s_mov_b32 s25, s65
    s_mov_b32 s26, 0x10000000
    s_mov_b32 s27, 0x00020000
    s_mov_b32 s23, 0x00020000
    """)
    stp.init(28, WS_END)
    stp.stamp()
    a.e(f"""
    v_mov_b32 v{vK0}, 0x{f2u(GK0):08x}
    v_lshrrev_b32 v{vRowl}, 2, v{vL}
    v_and_b32 v{vT[0]}, 3, v{vL}
    v_lshlrev_b32 v{vChunk16}, 4, v{vT[0]}
    v_bfe_u32 v{vT[0]}, v{vL}, 2, 2
    v_lshl_add_u32 v{vT[0]}, v{vHH}, 3, v{vT[0]}
    v_lshlrev_b32 v{vT[0]}, 6, v{vT[0]}
    v_and_b32 v{vT[1]}, 3, v{vL}
    v_lshl_add_u32 v{vT[0]}, v{vT[1]}, 3, v{vT[0]}
    v_and_b32 v{vT[1]}, 1, v{vG}
    v_lshl_add_u32 v{vW}, v{vT[1]}, 5, v{vT[0]}
    """)
    def dma_setup(sBi, sJ):
        a.e(f"""
        s_mov_b32 s20, s12
        s_mov_b32 s21, s13
        s_mov_b32 s22, {D*F*2}
        s_movk_i32 s37, 9216
        s_sub_u32 s38, s{sBi}, 20
        s_lshl_b32 s38, s38, 6
        s_lshl_b32 s39, s{sBi}, 6
        s_cmp_lt_u32 s{sBi}, 20
        s_cselect_b32 s20, s10, s20
        s_cselect_b32 s21, s11, s21
        s_cselect_b32 s22, {D*DH*2}, s22
        s_cselect_b32 s37, 36, s37
        s_cselect_b32 s38, 0, s38
        s_cmp_lt_u32 s{sBi}, 19
        s_cselect_b32 s20, s8, s20
        s_cselect_b32 s21, s9, s21
        s_cmp_lt_u32 s{sBi}, 18
        s_cselect_b32 s20, s6, s20
        s_cselect_b32 s21, s7, s21
        s_cselect_b32 s22, {D*D*2}, s22
        s_cselect_b32 s37, 1152, s37
        s_cselect_b32 s38, s39, s38
        v_mad_u32_u24 v{vDma}, v{vRowl}, s37, v{vChunk16}
        s_lshl_b32 s58, s37, 4
        s_mul_i32 s40, s30, 9
        s_mul_i32 s59, s40, s58
        s_add_u32 s59, s59, s38
        s_and_b32 s57, s{sJ}, 3
        s_mul_i32 s57, s57, {BUF}
        s_lshl_b32 s40, s40, 10
        s_add_u32 s57, s57, s40
        s_cmp_ge_u32 s{sJ}, s34
        s_cselect_b32 s22, 0, s22
        """)
    dma_item = f"""
        s_mov_b32 m0, s57
        s_add_u32 s57, s57, 1024
        buffer_load_dwordx4 v{vDma}, s[20:23], s59 offen lds
        s_add_u32 s59, s59, s58
        """
    a.e(f"""
    s_lshl_b32 s39, s31, 7
    s_lshl_b32 s40, s28, 4
    s_add_u32 s39, s39, s40
    s_mul_i32 s39, s39, 1152
    """)
    for cg in range(9):
        for h in range(2):
            a.e(f"""
            s_add_u32 m0, s43, {cg*16384 + h*1024}
            s_add_u32 s40, s39, {cg*128 + h*8*1152}
            buffer_load_dwordx4 v{vT[4+h]}, s[16:19], s40 offen lds
            """)
    a.e("s_add_u32 s41, s33, s29")
    dma_setup(41, 29)
    a.e("s_mov_b32 s56, s57")
    for i in range(9):
        a.e(f"buffer_load_dwordx4 {vr(wpre+4*i,4)}, v{vDma}, s[20:23], s59 offen\ns_add_u32 s59, s59, s58")
    a.e(f"""
    s_cmp_ge_u32 s28, 4
    s_cbranch_scc1 k1_pf2
    v_mul_u32_u24 v{vT[1]}, 10923, v0
    v_lshrrev_b32 v{vT[1]}, 16, v{vT[1]}
    v_mul_u32_u24 v{vT[2]}, 6, v{vT[1]}
    v_sub_u32 v{vT[2]}, v0, v{vT[2]}
    s_mul_i32 s40, s31, 36
    v_add_u32 v{vT[1]}, s40, v{vT[1]}
    v_min_u32 v{vT[1]}, 575, v{vT[1]}
    v_mul_lo_u32 v{vT[1]}, v{vT[1]}, s37
    v_lshl_add_u32 v{vT[1]}, v{vT[2]}, 7, v{vT[1]}
    buffer_load_dword v{vT[3]}, v{vT[1]}, s[20:23], s38 offen
    s_branch k1_pf3
    k1_pf2:
    s_mov_b32 s52, s14
    s_mov_b32 s53, s15
    s_mov_b32 s54, {S*S*2}
    s_mov_b32 s55, 0x00020000
    s_lshl_b32 s39, s2, 8
    v_and_b32 v{vT[2]}, 255, v0
    v_add_u32 v{vT[2]}, s39, v{vT[2]}
    v_lshlrev_b32 v{vT[2]}, 7, v{vT[2]}
    buffer_load_dword v{vT[3]}, v{vT[2]}, s[52:55], 0 offen
    k1_pf3:
    """)
    a.e(f"""
    s_lshl_b32 s39, s28, 4
    v_add_u32 v{vT[0]}, s39, v{vL15}
    v_bfe_u32 v{vT[1]}, v{vL15}, 1, 3
    v_lshlrev_b32 v{vT[0]}, 7, v{vT[0]}
    v_xor_b32 v{vT[2]}, v{vG}, v{vT[1]}
    v_lshl_add_u32 v{adr}, v{vT[2]}, 4, v{vT[0]}
    v_xor_b32 v{adr+1}, 64, v{adr}
    """)
    for r in range(1, 3):
        for p in range(2): a.e(f"v_add_u32 v{adr+2*r+p}, {65536*r}, v{adr+p}")
    for i in range(4): a.e(f"v_mov_b32 v{ones+i}, 0x3f803f80")
    a.e(f"""
    v_and_b32 v{vT[0]}, 3, v{vL}
    v_cmp_eq_u32 s[46:47], 1, v{vT[0]}
    v_cmp_eq_u32 s[48:49], 2, v{vT[0]}
    v_cmp_eq_u32 s[50:51], 3, v{vT[0]}
    v_lshrrev_b32 v{vT[1]}, 2, v{vL15}
    v_lshlrev_b32 v{vT[1]}, 4, v{vT[1]}
    v_add_u32 v{vT[1]}, v{vT[1]}, v{vL15}
    v_lshlrev_b32 v{vT[7]}, 2, v{vT[1]}
    """)
    stp.stamp()
    def ln_addr(t):
        cg = t >> 1
        return adr + 2*(cg >> 2) + (t & 1), (cg & 3) * 16384
    for t in range(18):
        if t % 2 == 0: a.e(f"s_waitcnt vmcnt({10 + 16 - t + (2 if en else 0)})")
        r, o = ln_addr(t)
        a.e(f"ds_read_b128 {vr(xr[t],4)}, v{r} offset:{o}")
    for t in range(18):
        a.e(f"s_waitcnt lgkmcnt({min(15,17-t)})")
        c0 = "0" if t == 0 else vr(acc, 4)
        c1 = "0" if t == 0 else vr(acc+4, 4)
        a.e(f"v_mfma_f32_16x16x32_bf16 {vr(acc,4)}, {vr(ones,4)}, {vr(xr[t],4)}, {c0}")
        a.e(f"v_mfma_f32_16x16x32_bf16 {vr(acc+4,4)}, {vr(xr[t],4)}, {vr(xr[t],4)}, {c1}")
    a.e("s_nop 7\ns_nop 3")
    q = acc+4
    a.e(f"""
    v_cndmask_b32 v{vT[0]}, v{q}, v{q+1}, s[46:47]
    v_cndmask_b32 v{vT[0]}, v{vT[0]}, v{q+2}, s[48:49]
    v_cndmask_b32 v{vT[0]}, v{vT[0]}, v{q+3}, s[50:51]
    ds_bpermute_b32 v{vT[4]}, v{vT[7]}, v{vT[0]}
    s_waitcnt lgkmcnt(0)
    """)
    ln_scalars(a, acc, vT[4], D, vT[2], vT[5], vT[0], vT[1], vT[6])
    for t in range(18):
        for i in range(4):
            w = xr[t] + i
            lo, hi = (vT[0], vT[1]) if not (i & 1) else (vT[6], vT[7])
            a.e(f"""
            v_lshlrev_b32 v{lo}, 16, v{w}
            v_and_b32 v{hi}, s45, v{w}
            v_fma_f32 v{lo}, v{lo}, v{vT[2]}, v{vT[5]}
            v_fma_f32 v{hi}, v{hi}, v{vT[2]}, v{vT[5]}
            v_cvt_pk_bf16_f32 v{w}, v{lo}, v{hi}
            """)
        r, o = ln_addr(t)
        a.e(f"ds_write_b128 v{r}, {vr(xr[t],4)} offset:{o}")
    a.e(f"""
    s_lshl_b32 s39, s30, 5
    v_add_u32 v{vT[0]}, s39, v{vL31}
    v_bfe_u32 v{vT[1]}, v{vL31}, 1, 3
    v_lshlrev_b32 v{vT[0]}, 7, v{vT[0]}
    v_xor_b32 v{vT[2]}, v{vHH}, v{vT[1]}
    """)
    for i in range(4):
        a.e(f"v_xor_b32 v{vT[1]}, {2*i}, v{vT[2]}\nv_lshl_add_u32 v{adr+i}, v{vT[1]}, 4, v{vT[0]}")
    for r in range(1, 3):
        for i in range(4): a.e(f"v_add_u32 v{adr+4*r+i}, {65536*r}, v{adr+i}")
    def fr_addr(t):
        cg = t >> 2
        return adr + 4*(cg >> 2) + (t & 3), (cg & 3) * 16384
    stp.stamp()
    a.e("s_waitcnt lgkmcnt(0)\ns_barrier")
    for t in range(36):
        r, o = fr_addr(t)
        a.e(f"ds_read_b128 {vr(xr[t],4)}, v{r} offset:{o}")
    tmpw = wpre
    a.e(f"""
    v_lshlrev_b32 v{vT[0]}, 4, v{vL}
    v_add_u32 v{vT[0]}, s56, v{vT[0]}
    s_waitcnt vmcnt(1) lgkmcnt(0)
    s_barrier
    """)
    for i in range(9):
        a.e(f"ds_write_b128 v{vT[0]}, {vr(tmpw+4*i,4)} offset:{1024*i}")
    a.e("s_waitcnt lgkmcnt(0)")
    for i in range(32): a.e(f"v_mov_b32 v{st+i}, 0")
    a.e("s_barrier")
    stp.stamp()
    allp = [prv+r for r in range(16)]
    def pack_items(swap=False):
        L = []
        for q in range(4):
            L.append(f"v_cvt_pk_bf16_f32 v{prv+2*q}, v{prv+4*q}, v{prv+4*q+1}")
            L.append(f"v_cvt_pk_bf16_f32 v{prv+2*q+1}, v{prv+4*q+2}, v{prv+4*q+3}")
        if swap:
            L.append("s_nop 1")
            for p in range(2):
                L.append(f"v_permlane32_swap_b32 v{prv+4*p}, v{prv+4*p+2}\nv_permlane32_swap_b32 v{prv+4*p+1}, v{prv+4*p+3}")
        return L
    def wa_store(stride, base_code):
        L = [f"s_movk_i32 s39, {stride}\nv_lshlrev_b32 v{vO[1]}, 4, v{vHH}\nv_mad_u32_u24 v{vO[0]}, v{vL31}, s39, v{vO[1]}", base_code]
        return L, [f"buffer_store_dwordx4 {vr(prv+4*p,4)}, v{vO[0]}, s[24:27], s61 offen offset:{p*32}" for p in range(2)]
    def epi(ty):
        if ty == "none": return [], []
        if ty == "Z1":
            pre, sts = wa_store(4608, f"s_mul_i32 s61, s36, 4608\ns_sub_u32 s40, s60, 20\ns_lshl_b32 s40, s40, 6\ns_add_u32 s61, s61, s40\ns_add_u32 s61, s61, {WS_Z1}")
            return pre + gelu_items(allp, vT[0:4], 44, vK0) + pack_items(True), sts
        if ty == "Q":
            pre, sts = wa_store(1152, f"s_mul_i32 s61, s36, 1152\ns_lshl_b32 s40, s60, 6\ns_add_u32 s61, s61, s40\ns_add_u32 s61, s61, {WS_Q}")
            return pre + [f"v_mul_f32 v{x}, 0x{f2u(DH ** -0.5 * math.log2(math.e)):08x}, v{x}" for x in allp] + pack_items(True), sts
        if ty == "K":
            pre = [f"""v_lshlrev_b32 v{vO[1]}, 3, v{vHH}
            v_lshl_add_u32 v{vO[0]}, v{vL31}, 5, v{vO[1]}
            v_lshlrev_b32 v{vO[1]}, 2, v{vL31}
            s_lshr_b32 s61, s36, 5
            s_mul_i32 s61, s61, 2304
            s_add_u32 s61, s61, {WS_KV}"""]
            sts = [f"buffer_store_dwordx2 {vr(prv+2*q,2)}, v{vO[0]}, s[24:27], s61 offen offset:{q*16}" for q in range(2)]
            sts.append(f"s_mov_b32 exec_hi, 0\nbuffer_store_dword v{prv+4}, v{vO[1]}, s[24:27], s61 offen offset:1024\ns_mov_b64 exec, -1")
            return pre + pack_items(), sts
        if ty == "V":
            pre = [f"""s_movk_i32 s39, 288
            v_mul_u32_u24 v{vO[1]}, s39, v{vHH}
            v_lshl_add_u32 v{vO[0]}, v{vL31}, 4, v{vO[1]}
            s_lshr_b32 s61, s36, 5
            s_mul_i32 s61, s61, 2304
            s_add_u32 s61, s61, {WS_KV+1152}"""]
            sts = [f"""s_mov_b32 exec_lo, 0x3ffff
            s_mov_b32 exec_hi, 0x3ffff
            buffer_store_dwordx4 {vr(prv,4)}, v{vO[0]}, s[24:27], s61 offen
            buffer_store_dwordx4 {vr(prv+4,4)}, v{vO[0]}, s[24:27], s61 offen offset:576
            s_mov_b64 exec, -1"""]
            return pre + pack_items(), sts
        if ty == "Z2":
            pre = [f"""v_lshlrev_b32 v{vO[1]}, 4, v{vHH}
            v_lshl_add_u32 v{vO[0]}, v{vL31}, 12, v{vO[1]}
            s_sub_u32 s40, s60, 92
            s_lshl_b32 s40, s40, 17
            s_lshl_b32 s61, s36, 1
            s_add_u32 s61, s61, s40
            s_add_u32 s61, s61, {WS_Z2T}"""]
            L = pre + gelu_items(allp, vT[0:4], 44, vK0)
            for r in range(16):
                L.append(f"v_add_f32 v{st+r*2}, v{st+r*2}, v{prv+r}")
                L.append(f"v_fma_f32 v{st+r*2+1}, v{prv+r}, v{prv+r}, v{st+r*2+1}")
            sts = [f"buffer_store_dwordx4 {vr(prv+4*p,4)}, v{vO[0]}, s[24:27], s61 offen offset:{p*32}" for p in range(2)]
            return L + pack_items(True), sts
    NST = {"none": 0, "Z1": 2, "Q": 2, "K": 3, "V": 2, "Z2": 2}
    def reads(t):
        for h in range(2):
            a.e(f"ds_read_b64_tr_b16 {vr(Wf[t%NS]+2*h,2)}, v{vWb} offset:{t*1024+h*256}")
    def variant(wa, ty):
        a.dropping = bool(os.environ.get('DROPK1'))
        items, sts = epi(ty)
        items = list(items)
        PD = NS - 1
        per = -(-len(items) // 33) if items else 0
        for t in range(PD): reads(t)
        for t in range(36):
            if t + PD <= 35: reads(t+PD)
            ahead = min(35, t + PD) - t
            a.e(f"s_waitcnt lgkmcnt({2*ahead})")
            c = "0" if t == 0 else vr(acc, 16)
            A, B = (vr(Wf[t%NS],4), vr(xr[t],4)) if wa else (vr(xr[t],4), vr(Wf[t%NS],4))
            a.e(f"v_mfma_f32_32x32x16_bf16 {vr(acc,16)}, {A}, {B}, {c}")
            if t % 3 == 1 and t < 27: a.e(dma_item)
            for _ in range(per):
                if items: a.e(items.pop(0))
            if t >= 34 or (not items and t >= 27):
                if sts: a.e(sts.pop(0))
        for x in items: a.e(x)
        for x in sts: a.e(x)
        a.dropping = False
        a.e(f"s_waitcnt vmcnt({NST[ty] + (2 if en else 0)})\ns_branch k1_stepend")
    a.e("s_mov_b32 s35, s29\ns_mov_b32 s60, -1")
    a.label("k1_loop")
    stp.stamp()
    a.e(f"""
    s_cmp_ge_u32 s35, s34
    s_cbranch_scc1 k1_idle
    s_add_u32 s41, s33, s35
    s_and_b32 s39, s35, 3
    s_mul_i32 s39, s39, {BUF}
    v_add_u32 v{vWb}, s39, v{vW}
    s_add_u32 s52, s35, 2
    s_add_u32 s53, s33, s52
    """)
    dma_setup(53, 52)
    a.e(f"""
    s_cmp_eq_u32 s41, 19
    s_cbranch_scc1 k1_xa
    s_cmp_ge_u32 s41, 92
    s_cbranch_scc1 k1_xa
    s_cmp_eq_u32 s60, -1
    s_cbranch_scc1 k1_wa_none
    s_cmp_lt_u32 s60, 18
    s_cbranch_scc1 k1_wa_Q
    s_cmp_eq_u32 s60, 18
    s_cbranch_scc1 k1_wa_K
    s_cmp_eq_u32 s60, 19
    s_cbranch_scc1 k1_wa_V
    """)
    variant(True, "Z1")
    for ty in ("none", "Q", "K", "V"):
        a.label(f"k1_wa_{ty}")
        variant(True, ty)
    a.label("k1_xa")
    a.e(f"""
    s_cmp_eq_u32 s60, -1
    s_cbranch_scc1 k1_xa_none
    s_cmp_lt_u32 s60, 18
    s_cbranch_scc1 k1_xa_Q
    s_cmp_lt_u32 s60, 92
    s_cbranch_scc1 k1_xa_Z1
    """)
    variant(False, "Z2")
    for ty in ("none", "Q", "Z1"):
        a.label(f"k1_xa_{ty}")
        variant(False, ty)
    a.label("k1_stepend")
    a.e("s_nop 7\ns_nop 3")
    for i in range(16): a.e(f"v_mov_b32 v{prv+i}, v{acc+i}")
    a.e(f"""
    s_mov_b32 s60, s41
    s_add_u32 s35, s35, 2
    s_sub_u32 s39, s35, s29
    s_cmp_ge_u32 s39, s34
    s_cbranch_scc1 k1_idle
    s_barrier
    s_branch k1_loop
    """)
    a.label("k1_idle")
    a.e(f"""
    s_cmp_lt_u32 s60, 18
    s_cbranch_scc1 k1_fin_Q
    s_cmp_lt_u32 s60, 92
    s_cbranch_scc1 k1_fin_Z1
    """)
    for ty in ("Z2", "Q", "Z1"):
        if ty != "Z2": a.label(f"k1_fin_{ty}")
        items, sts = epi(ty)
        for x in items + sts: a.e(x)
        a.e("s_branch k1_fin")
    a.label("k1_fin")
    stp.stamp()
    a.e(f"s_cmp_lt_u32 s32, 8\ns_cbranch_scc1 {END}")
    for sh in (8, 4, 2, 1):
        for i in range(32):
            a.e(f"v_add_f32_dpp v{st+i}, v{st+i}, v{st+i} row_ror:{sh} row_mask:0xf bank_mask:0xf")
        a.e("s_nop 1")
    for i in range(32):
        a.e(f"ds_swizzle_b32 v{xr[0]+i}, v{st+i} offset:0x401F")
    a.e("s_waitcnt lgkmcnt(0)")
    for i in range(32):
        a.e(f"v_add_f32 v{st+i}, v{st+i}, v{xr[0]+i}")
    a.e(f"""
    v_lshlrev_b32 v{vO[0]}, 5, v{vHH}
    s_sub_u32 s39, s32, 8
    s_lshl_b32 s39, s39, 1
    s_add_u32 s39, s39, s29
    s_lshl_b32 s39, s39, 14
    s_lshl_b32 s40, s36, 3
    s_add_u32 s39, s39, s40
    s_add_u32 s39, s39, {WS_STAT}
    v_cmp_eq_u32 vcc, 0, v{vL31}
    s_and_saveexec_b64 s[54:55], vcc
    """)
    for q in range(4):
        a.e(f"buffer_store_dwordx4 {vr(st+q*8,4)}, v{vO[0]}, s[24:27], s39 offen offset:{q*64}")
        a.e(f"buffer_store_dwordx4 {vr(st+q*8+4,4)}, v{vO[0]}, s[24:27], s39 offen offset:{q*64+16}")
    a.label(END)
    a.e("s_endpgm")
    a.end_kernel(name, nv)
    print("k1 vgprs", nv)
    for p in range(256): assert (p*10923)>>16 == p//6
```
